```python
import torch

def _softmax(x, axis=-1):
    return torch.softmax(x, dim=axis)
def _gelu(x):
    return torch.nn.functional.gelu(x, approximate="tanh")
def _silu(x):
    return torch.nn.functional.silu(x)
def _sigmoid(x):
    return torch.sigmoid(x)
def _layernorm(x, axis=-1, eps=1e-5):
    m = x.mean(dim=axis, keepdim=True)
    v = x.var(dim=axis, keepdim=True, unbiased=False)
    return (x - m) / torch.sqrt(v + eps)
def _scatter_add(tgt, idx, src, axis=0):
    return tgt.clone().index_add_(axis, idx, src)
def _segment_sum(src, seg, n):
    out = torch.zeros((n,) + src.shape[1:], dtype=src.dtype)
    return out.index_add_(0, seg, src)
def _pad(x, pw):
    flat = tuple(v for pair in reversed(pw) for v in pair)
    return torch.nn.functional.pad(x, flat)

kernel_name = 'gated_mix__sliding_local_dilated__mixer_s_mlp__prompt'

def setup_inputs():

    _w = (lambda a: (lambda t: t.to(torch.bfloat16) if t.is_floating_point() else t)(torch.as_tensor(a)))
    def _A_setup():
        B, S, D = 1, 2048, 640
        return {
            "x": _w((lambda *s: torch.randn(*s, dtype=torch.bfloat16) * 0.05)(B, S, D)),
            "wqkv": _w((lambda *s: torch.randn(*s, dtype=torch.bfloat16) * 3.2)(D, 3 * D)),
            "wo": _w((lambda *s: torch.randn(*s, dtype=torch.bfloat16) * 0.1)(D, D)),
        }
    _A_in = _A_setup()

    def _B_setup():
        B, S, D, F = 1, 2048, 640, 1728
        return {
            "x":  _w((lambda *s: torch.randn(*s, dtype=torch.bfloat16) * 0.05)(B, S, D)),
            "w1": _w((lambda *s: torch.randn(*s, dtype=torch.bfloat16) * 3.2)(D, D) * (D ** -0.5)),
            "w2": _w((lambda *s: torch.randn(*s, dtype=torch.bfloat16) * 3.2)(D, D) * (D ** -0.5)),
            "w3": _w((lambda *s: torch.randn(*s, dtype=torch.bfloat16) * 3.2)(D, F) * (D ** -0.5)),
            "w4": _w((lambda *s: torch.randn(*s, dtype=torch.bfloat16) * 3.2)(F, D) * (F ** -0.5)),
        }
    _B_in = _B_setup()

    return {
        "A_x": _A_in["x"],
        "A_wqkv": _A_in["wqkv"],
        "A_wo": _A_in["wo"],
        "B_x": _B_in["x"],
        "B_w1": _B_in["w1"],
        "B_w2": _B_in["w2"],
        "B_w3": _B_in["w3"],
        "B_w4": _B_in["w4"],
        "gate_w": _w((lambda *s: torch.randn(*s, dtype=torch.bfloat16) * 0.05)(640) * 16.0),
    }

def reference(A_x, A_wqkv, A_wo, B_x, B_w1, B_w2, B_w3, B_w4, gate_w):
    def _A_ref(x, wqkv, wo):
        B, S, D = x.shape
        H = 32; Dh = D // H
        W, dil = 8, 2
        qkv = (lambda x, *d: x.permute(*d))((x @ wqkv).reshape(B, S, 3, H, Dh), 2, 0, 3, 1, 4)
        q, k, v = qkv[0], qkv[1], qkv[2]
        scale = Dh ** -0.5
        pos = torch.arange(S)
        off = torch.arange(W) * dil
        idx = pos[:, None] - off[None, :]
        mask = idx >= 0
        idx_c = torch.where(mask, idx, 0).reshape(-1)
        kg = k[:, :, idx_c, :].reshape(B, H, S, W, Dh)
        vg = v[:, :, idx_c, :].reshape(B, H, S, W, Dh)
        logits = torch.einsum("bhsd,bhswd->bhsw", q, kg) * scale
        logits = torch.where(mask[None, None, :, :], logits, -1e9)
        attn = _softmax(logits, axis=-1)
        o = torch.einsum("bhsw,bhswd->bhsd", attn, vg)
        return (lambda x, *d: x.permute(*d))(o, 0, 2, 1, 3).reshape(B, S, D) @ wo

    def _B_ref(x, w1, w2, w3, w4):
        B, S, D = x.shape
        h = _gelu(_layernorm(x, axis=-1) @ w1)
        c = D // 4
        g0 = _pad(h[:, :, 0*c:1*c], ((0, 0), (1, 0), (0, 0)))[:, :S, :]
        g1 = _pad(h[:, :, 1*c:2*c], ((0, 0), (0, 1), (0, 0)))[:, 1:, :]
        g2 = _pad(h[:, :, 2*c:3*c], ((0, 0), (2, 0), (0, 0)))[:, :S, :]
        g3 = _pad(h[:, :, 3*c:   ], ((0, 0), (0, 2), (0, 0)))[:, 2:, :]
        hs = torch.concatenate([g0, g1, g2, g3], axis=-1) @ w2
        x1 = x + hs
        h2 = _gelu(_layernorm(x1, axis=-1) @ w3) @ w4
        return x1 + h2

    x = A_x
    g = _sigmoid((x * gate_w).sum(-1, keepdims=True))
    a = _A_ref(x, A_wqkv, A_wo)
    b = _B_ref(x, B_w1, B_w2, B_w3, B_w4)
    return g * a + (1 - g) * b
```

```python
import sys, struct

NAME = "gated_mix__sliding_local_dilated__mixer_s_mlp__prompt"
S, D, F = 2048, 640, 1728

WS_QKV = 0
WS_HS = 0x800000 + 0x1000
WS_O = 0xB00000
WS_X1 = 0xE00000
WS_AO = 0x1100000
WS_H3 = 0x1400000
WS_PART = 0x1C00000


def f32bits(x):
    return struct.unpack("<I", struct.pack("<f", x))[0]


class E:
    def __init__(self):
        self.L = []
        self.n = 0

    def __call__(self, s):
        self.L.append("    " + s)

    def label(self, l):
        self.L.append(l + ":")

    def new(self, p="L"):
        self.n += 1
        return f"{p}_{self.n}"

    def nop(self, n):
        while n > 0:
            k = min(n, 16)
            self(f"s_nop {k-1}")
            n -= k

    def c(self, s):
        self.L.append("    ; " + s)


def vr(a, n=1):
    return f"v{a}" if n == 1 else f"v[{a}:{a+n-1}]"


def sr(a, n=1):
    return f"s{a}" if n == 1 else f"s[{a}:{a+n-1}]"


P_X, P_WQKV, P_WO, P_BX, P_W1, P_W2, P_W3, P_W4 = 16, 18, 20, 22, 24, 26, 28, 30
P_GW, P_OUT, P_DBG, P_WS = 32, 34, 36, 38
SRD_A, SRD_B, SRD_C, SRD_D, SRD_E, SRD_F = 40, 44, 48, 52, 56, 60
S_ROW0, S_COL0, S_WAVE, S_KA, S_KB, S_BUF, S_CNT = 64, 65, 66, 67, 68, 69, 70
S_T0, S_T1, S_T2, S_T3 = 71, 72, 73, 74
S_MA, S_MB, S_RB, S_CT, S_LDB = 75, 76, 77, 78, 79
S_M0, S_M1, S_M2, S_M3 = 80, 82, 84, 86
S_K0, S_K1, S_K2, S_K3 = 88, 89, 90, 91
S_R0 = 92


def srd(e, d, ptr, off, nbytes):
    if off >= 0:
        e(f"s_add_u32 s{d}, s{ptr}, {off}")
        e(f"s_addc_u32 s{d+1}, s{ptr+1}, 0")
    else:
        e(f"s_sub_u32 s{d}, s{ptr}, {-off}")
        e(f"s_subb_u32 s{d+1}, s{ptr+1}, 0")
    e(f"s_mov_b32 s{d+2}, {nbytes}")
    e(f"s_mov_b32 s{d+3}, 0x00020000")


class Cfg:
    def __init__(self, Tm, Tn, K, SB, NBUF, WM, WN, lda, ldb):
        self.Tm, self.Tn, self.K, self.SB, self.NBUF, self.WM, self.WN = Tm, Tn, K, SB, NBUF, WM, WN
        self.lda, self.ldb = lda, ldb
        self.NS = K // 64
        self.NT = Tn // 16
        self.mt = Tm // 16 // WM
        self.nt = self.NT // WN
        self.ABYTES = Tm * 128
        self.BBYTES = 64 * SB
        self.BUFSZ = self.ABYTES + self.BBYTES
        self.nAw = Tm // 8 // 4
        self.nBw = SB // 16 // 4
        self.CPR = SB // 16
        assert self.NBUF * self.BUFSZ <= 163840
        assert K % 64 == 0


def loader(e, c, ldb_sgpr=None):
    n = c.nAw + c.nBw
    VA, VB = 8, 16
    e.c("---- loader ----")
    e("v_and_b32 v1, 63, v0")
    e(f"s_sub_u32 s{S_T0}, s{S_WAVE}, 4")
    e("v_lshrrev_b32 v2, 3, v1")
    e("v_and_b32 v3, 7, v1")
    e(f"s_mul_i32 s{S_T1}, s{S_T0}, {c.nAw*8}")
    e(f"s_mov_b32 s{S_T2}, {c.lda}")
    for i in range(c.nAw):
        e(f"v_add3_u32 v4, v2, s{S_T1}, {8*i}")
        e("v_bfe_u32 v5, v4, 1, 3")
        e("v_xor_b32 v5, v5, v3")
        e("v_lshlrev_b32 v5, 4, v5")
        e(f"v_add_u32 v4, s{S_ROW0}, v4")
        e(f"v_mad_u32_u24 v{VA+i}, v4, s{S_T2}, v5")
    if ldb_sgpr is None:
        e(f"s_mov_b32 s{S_LDB}, {c.ldb}")
    M = -(-65536 // c.CPR)
    e(f"s_mul_i32 s{S_T1}, s{S_T0}, {c.nBw*64}")
    e(f"s_lshl_b32 s{S_T3}, s{S_COL0}, 1")
    e(f"s_mov_b32 s{S_T2}, {M}")
    e("v_bfrev_b32 v7, 1")
    for i in range(c.nBw):
        e(f"v_add_u32 v4, s{S_T1}, v1")
        if i:
            e(f"v_add_u32 v4, {64*i}, v4")
        e(f"v_mul_u32_u24 v5, s{S_T2}, v4")
        e("v_lshrrev_b32 v5, 16, v5")
        e(f"v_mul_u32_u24 v6, {c.CPR}, v5")
        e("v_sub_u32 v4, v4, v6")
        e("v_bfe_u32 v6, v5, 3, 1")
        e("v_lshlrev_b32 v6, 1, v6")
        e("v_xor_b32 v4, v4, v6")
        if c.NT * 2 < c.CPR:
            e(f"v_cmp_gt_u32 vcc, {c.NT*2}, v4")
        e("v_lshlrev_b32 v4, 4, v4")
        e(f"v_add_u32 v4, s{S_T3}, v4")
        e(f"v_mad_u32_u24 v{VB+i}, v5, s{S_LDB}, v4")
        if c.NT * 2 < c.CPR:
            e(f"v_cndmask_b32 v{VB+i}, v7, v{VB+i}, vcc")
    e(f"s_mul_i32 s{S_MA}, s{S_T0}, {c.nAw*1024}")
    e(f"s_mul_i32 s{S_MB}, s{S_T0}, {c.nBw*1024}")
    e(f"s_add_u32 s{S_MB}, s{S_MB}, {c.ABYTES}")
    e(f"s_mov_b32 s{S_KA}, 0")
    e(f"s_mov_b32 s{S_KB}, 0")
    e(f"s_lshl_b32 s{S_T2}, s{S_LDB}, 6")

    def issue():
        for i in range(c.nAw):
            e(f"s_add_u32 m0, s{S_MA}, {1024*i}")
            e("s_nop 0")
            e(f"buffer_load_dwordx4 v{VA+i}, s[{SRD_A}:{SRD_A+3}], s{S_KA} offen lds")
        for i in range(c.nBw):
            e(f"s_add_u32 m0, s{S_MB}, {1024*i}")
            e("s_nop 0")
            e(f"buffer_load_dwordx4 v{VB+i}, s[{SRD_B}:{SRD_B+3}], s{S_KB} offen lds")
        e(f"s_add_u32 s{S_KA}, s{S_KA}, 128")
        e(f"s_add_u32 s{S_KB}, s{S_KB}, s{S_T2}")
        e(f"s_add_u32 s{S_MA}, s{S_MA}, {c.BUFSZ}")
        e(f"s_add_u32 s{S_MB}, s{S_MB}, {c.BUFSZ}")
        e(f"s_cmp_ge_u32 s{S_MA}, {c.NBUF*c.BUFSZ}")
        e(f"s_cselect_b32 s{S_T3}, {c.NBUF*c.BUFSZ}, 0")
        e(f"s_sub_u32 s{S_MA}, s{S_MA}, s{S_T3}")
        e(f"s_sub_u32 s{S_MB}, s{S_MB}, s{S_T3}")

    P = c.NBUF - 1
    nmain = c.NS - P
    lp = e.new("Lldp")
    e(f"s_mov_b32 s{S_CNT}, {P}")
    e.label(lp)
    issue()
    e(f"s_sub_u32 s{S_CNT}, s{S_CNT}, 1")
    e(f"s_cmp_lg_u32 s{S_CNT}, 0")
    e(f"s_cbranch_scc1 {lp}")
    lm = e.new("Lldm")
    e(f"s_mov_b32 s{S_CNT}, {nmain}")
    e.label(lm)
    e(f"s_waitcnt vmcnt({n*(P-1)})")
    e("s_barrier")
    issue()
    e(f"s_sub_u32 s{S_CNT}, s{S_CNT}, 1")
    e(f"s_cmp_lg_u32 s{S_CNT}, 0")
    e(f"s_cbranch_scc1 {lm}")
    for j in range(P):
        e(f"s_waitcnt vmcnt({n*(P-1-j)})")
        e("s_barrier")
    e("s_endpgm")


class Regs:
    def __init__(self, c, nextra):
        self.ACC = 16
        p = self.ACC + c.mt * c.nt * 4
        self.R = []
        for s in range(2):
            X = p; p += c.mt * 4
            W = p; p += c.nt * 4
            self.R.append((X, W))
        self.EX = p; p += nextra * 4
        self.ONES = p; p += 4
        self.END = p
        self.c = c

    def acc(self, i, t):
        return self.ACC + (i * self.c.nt + t) * 4


VA0, VA1, VBE, VBO = 8, 9, 10, 11
VJ, VG = 2, 3


def consumer(e, c, R, extras=None, pre=None):
    e.c("---- consumer ----")
    e("v_and_b32 v1, 63, v0")
    e(f"v_and_b32 v{VJ}, 15, v1")
    e(f"v_lshrrev_b32 v{VG}, 4, v1")
    if c.WN == 2:
        e(f"s_lshr_b32 s{S_T0}, s{S_WAVE}, 1")
        e(f"s_and_b32 s{S_T1}, s{S_WAVE}, 1")
    else:
        e(f"s_mov_b32 s{S_T0}, s{S_WAVE}")
        e(f"s_mov_b32 s{S_T1}, 0")
    e(f"v_bfe_u32 v4, v{VJ}, 1, 3")
    e(f"v_xor_b32 v4, v4, v{VG}")
    e("v_lshlrev_b32 v4, 4, v4")
    e(f"v_lshl_add_u32 v4, v{VJ}, 7, v4")
    e(f"s_mul_i32 s{S_T2}, s{S_T0}, {c.mt*2048}")
    e(f"v_add_u32 v{VA0}, s{S_T2}, v4")
    e(f"v_xor_b32 v{VA1}, 64, v{VA0}")
    e(f"v_lshrrev_b32 v4, 2, v{VJ}")
    e(f"v_lshl_add_u32 v4, v{VG}, 3, v4")
    e(f"v_mul_u32_u24 v4, {c.SB}, v4")
    e(f"v_and_b32 v5, 3, v{VJ}")
    e("v_lshl_add_u32 v4, v5, 3, v4")
    e(f"s_mul_i32 s{S_T2}, s{S_T1}, {c.nt*32}")
    e(f"s_add_u32 s{S_T2}, s{S_T2}, {c.ABYTES}")
    e(f"v_add_u32 v4, s{S_T2}, v4")
    e(f"v_and_b32 v5, 1, v{VG}")
    e("v_lshlrev_b32 v5, 5, v5")
    if c.WN == 2 and (c.nt & 1):
        e(f"s_cmp_eq_u32 s{S_T1}, 1")
        e(f"s_cselect_b32 s{S_T2}, -1, 1")
        e(f"v_mul_i32_i24 v5, s{S_T2}, v5")
    e(f"v_add_u32 v{VBE}, v4, v5")
    e(f"v_sub_u32 v{VBO}, v4, v5")
    for r in range(R.ACC, R.ACC + c.mt * c.nt * 4):
        e(f"v_mov_b32 v{r}, 0")
    for r in range(R.EX, R.ONES):
        e(f"v_mov_b32 v{r}, 0")
    for r in range(R.ONES, R.ONES + 4):
        e(f"v_mov_b32 v{r}, 0x3f803f80")
    if pre:
        pre(e)

    def reads(s, ks):
        X, W = R.R[s]
        out = []
        va = VA0 if ks == 0 else VA1
        for i in range(c.mt):
            out.append(f"ds_read_b128 {vr(X+4*i,4)}, v{va} offset:{i*2048}")
        for t in range(c.nt):
            vb = VBE if t % 2 == 0 else VBO
            for h in range(2):
                out.append(f"ds_read_b64_tr_b16 {vr(W+4*t+2*h,2)}, v{vb} offset:{t*32 + (32*ks+4*h)*c.SB}")
        return out

    def mfmas(s):
        X, W = R.R[s]
        out = []
        for t in range(c.nt):
            for i in range(c.mt):
                a = R.acc(i, t)
                out.append(f"v_mfma_f32_16x16x32_bf16 {vr(a,4)}, {vr(W+4*t,4)}, {vr(X+4*i,4)}, {vr(a,4)}")
        return out

    def interleave(ms, rs):
        k = 0
        per = -(-len(rs) // max(1, len(ms) - 2)) if rs else 0
        for m in ms:
            e(m)
            for _ in range(per):
                if k < len(rs):
                    e(rs[k]); k += 1
        while k < len(rs):
            e(rs[k]); k += 1

    e(f"s_mov_b32 s{S_BUF}, 0")
    e("s_barrier")
    for r in reads(0, 0):
        e(r)

    def body(last):
        e("s_waitcnt lgkmcnt(0)")
        interleave(mfmas(0), reads(1, 1))
        if extras:
            extras(e, 0)
        e("s_waitcnt lgkmcnt(0)")
        if not last:
            e("s_barrier")
            e(f"s_add_u32 s{S_BUF}, s{S_BUF}, {c.BUFSZ}")
            e(f"s_cmp_ge_u32 s{S_BUF}, {c.NBUF*c.BUFSZ}")
            e(f"s_cselect_b32 s{S_T2}, {c.NBUF*c.BUFSZ}, 0")
            e(f"s_sub_u32 s{S_BUF}, s{S_BUF}, s{S_T2}")
            e(f"s_sub_u32 s{S_T2}, {c.BUFSZ}, s{S_T2}")
            for v in (VA0, VA1, VBE, VBO):
                e(f"v_add_u32 v{v}, s{S_T2}, v{v}")
            interleave(mfmas(1), reads(0, 0))
        else:
            interleave(mfmas(1), [])
        if extras:
            extras(e, 1)

    lp = e.new("Lc")
    e(f"s_mov_b32 s{S_CNT}, {c.NS-1}")
    e.label(lp)
    body(False)
    e(f"s_sub_u32 s{S_CNT}, s{S_CNT}, 1")
    e(f"s_cmp_lg_u32 s{S_CNT}, 0")
    e(f"s_cbranch_scc1 {lp}")
    body(True)
    e.nop(10)


def per_wave_blocks(e, blocks):
    done = e.new("Lxd")
    for w, b in enumerate(blocks):
        nxt = e.new("Lx")
        if w < len(blocks) - 1:
            e(f"s_cmp_lg_u32 s{S_WAVE}, {w}")
            e(f"s_cbranch_scc1 {nxt}")
        for s in b:
            e(s)
        if w < len(blocks) - 1:
            e(f"s_branch {done}")
            e.label(nxt)
    e.label(done)


def bf16r(e, d, s):
    e(f"v_cvt_pk_bf16_f32 v{d}, v{s}, v{s}")
    e(f"v_lshlrev_b32 v{d}, 16, v{d}")


def store_addr(e, c, vdst, ldc, row_extra=0):
    if c.WN == 2:
        e(f"s_lshr_b32 s{S_T0}, s{S_WAVE}, 1")
        e(f"s_and_b32 s{S_T1}, s{S_WAVE}, 1")
    else:
        e(f"s_mov_b32 s{S_T0}, s{S_WAVE}")
        e(f"s_mov_b32 s{S_T1}, 0")
    e(f"s_mul_i32 s{S_T2}, s{S_T0}, {c.mt*16}")
    e(f"s_add_u32 s{S_T2}, s{S_T2}, s{S_ROW0}")
    if isinstance(row_extra, str):
        e(f"s_add_u32 s{S_T2}, s{S_T2}, {row_extra}")
    elif row_extra:
        e(f"s_add_u32 s{S_T2}, s{S_T2}, {row_extra}")
    e(f"s_mul_i32 s{S_T3}, s{S_T1}, {c.nt*16}")
    e(f"s_add_u32 s{S_T3}, s{S_T3}, s{S_COL0}")
    e(f"s_lshl_b32 s{S_T3}, s{S_T3}, 1")
    e(f"v_add_u32 v4, s{S_T2}, v{VJ}")
    e(f"v_lshl_add_u32 v5, v{VG}, 3, s{S_T3}")
    e(f"s_mov_b32 s{S_T2}, {ldc}")
    e(f"v_mad_u32_u24 v{vdst}, v4, s{S_T2}, v5")
    for i in range(c.mt):
        e(f"s_mov_b32 s{S_R0+i}, {i*16*ldc}")


def epi_plain(e, c, R, ldc):
    VS = 12
    store_addr(e, c, VS, ldc)
    T = R.R[0][0]
    k = 0
    for i in range(c.mt):
        for t in range(c.nt):
            a = R.acc(i, t)
            p = T + 2 * (k % 8); k += 1
            e(f"v_cvt_pk_bf16_f32 v{p}, v{a}, v{a+1}")
            e(f"v_cvt_pk_bf16_f32 v{p+1}, v{a+2}, v{a+3}")
            e(f"buffer_store_dwordx2 {vr(p,2)}, v{VS}, s[{SRD_C}:{SRD_C+3}], s{S_R0+i} offen offset:{t*32}")
    e("s_endpgm")


GELU_C0 = 2.0 * 0.7978845608028654 * 1.4426950408889634
GELU_C1 = GELU_C0 * 0.044715


def gelu4(e, a, T, vmb, vrs, cs, pout):
    for r in range(4):
        e(f"v_fma_f32 v{T+r}, -v{vmb}, v{cs+r}, v{a+r}")
    for r in range(4):
        e(f"v_mul_f32 v{T+r}, v{T+r}, v{vrs}")
    e(f"v_cvt_pk_bf16_f32 v{T+4}, v{T}, v{T+1}")
    e(f"v_cvt_pk_bf16_f32 v{T+5}, v{T+2}, v{T+3}")
    e(f"v_lshlrev_b32 v{T}, 16, v{T+4}")
    e(f"v_and_b32 v{T+1}, 0xffff0000, v{T+4}")
    e(f"v_lshlrev_b32 v{T+2}, 16, v{T+5}")
    e(f"v_and_b32 v{T+3}, 0xffff0000, v{T+5}")
    for r in range(4):
        e(f"v_mul_f32 v{T+4+r}, v{T+r}, v{T+r}")
    for r in range(4):
        e(f"v_fma_f32 v{T+4+r}, v{T+4+r}, s{S_K1}, v{VK0}")
    for r in range(4):
        e(f"v_mul_f32 v{T+4+r}, v{T+4+r}, v{T+r}")
    for r in range(4):
        e(f"v_exp_f32 v{T+4+r}, v{T+4+r}")
    for r in range(4):
        e(f"v_add_f32 v{T+4+r}, 1.0, v{T+4+r}")
    for r in range(4):
        e(f"v_rcp_f32 v{T+4+r}, v{T+4+r}")
    for r in range(4):
        e(f"v_mul_f32 v{T+r}, v{T+r}, v{T+4+r}")
    e(f"v_cvt_pk_bf16_f32 v{pout}, v{T}, v{T+1}")
    e(f"v_cvt_pk_bf16_f32 v{pout+1}, v{T+2}, v{T+3}")


VK0 = 13


def ln_from_sums(e, vsum, vsq, vmb, vrs, t):
    e(f"v_mul_f32 v{vsum}, {hex(f32bits(1.0/640))}, v{vsum}")
    e(f"v_mul_f32 v{vsq}, {hex(f32bits(1.0/640))}, v{vsq}")
    e(f"v_fma_f32 v{vsq}, -v{vsum}, v{vsum}, v{vsq}")
    e(f"v_max_f32 v{vsq}, 0, v{vsq}")
    bf16r(e, vmb, vsum)
    bf16r(e, t, vsq)
    e(f"v_add_f32 v{t}, {hex(f32bits(1e-5))}, v{t}")
    bf16r(e, t, t)
    e(f"v_sqrt_f32 v{t}, v{t}")
    e("s_nop 0")
    bf16r(e, t, t)
    e(f"v_rcp_f32 v{vrs}, v{t}")
    e("s_nop 0")


def kernel_head(e, name, nwg):
    e.L.append(f".globl {name}")
    e.L.append(".p2align 8")
    e.L.append(f".type {name},@function")
    e.label(name)
    end = e.new("Lend")
    e(f"s_cmp_ge_u32 s2, {nwg}")
    e(f"s_cbranch_scc1 {end}")
    e("s_load_dwordx16 s[16:31], s[0:1], 0")
    e("s_load_dwordx8 s[32:39], s[0:1], 64")
    e("v_lshrrev_b32 v1, 6, v0")
    e("s_nop 0")
    e(f"v_readfirstlane_b32 s{S_WAVE}, v1")
    return end


def kd(name, vgpr):
    acc = (vgpr + 3) // 4 * 4
    return f""".p2align 6
.amdhsa_kernel {name}
  .amdhsa_next_free_vgpr {vgpr}
  .amdhsa_next_free_sgpr 102
  .amdhsa_accum_offset {acc}
  .amdhsa_group_segment_fixed_size 0
  .amdhsa_kernarg_size 96
  .amdhsa_user_sgpr_count 2
  .amdhsa_user_sgpr_kernarg_segment_ptr 1
  .amdhsa_system_sgpr_workgroup_id_x 1
.end_amdhsa_kernel
"""


def stage1(e):
    name = "k1_kernel"
    end = kernel_head(e, name, 256)
    c = Cfg(128, 160, 640, 320, 4, 2, 2, 1280, None)
    e("s_and_b32 s3, s2, 7")
    e("s_lshr_b32 s4, s2, 3")
    e("s_lshr_b32 s5, s3, 2")
    e("s_and_b32 s3, s3, 3")
    e("s_and_b32 s6, s4, 7")
    e("s_lshl_b32 s5, s5, 3")
    e(f"s_add_u32 s{S_RB}, s5, s6")
    e("s_lshr_b32 s4, s4, 3")
    e("s_lshl_b32 s4, s4, 2")
    e(f"s_add_u32 s{S_CT}, s4, s3")
    e(f"s_lshl_b32 s{S_ROW0}, s{S_RB}, 7")
    e("s_waitcnt lgkmcnt(0)")
    srd(e, SRD_A, P_X, 0, S * 1280)
    lw1 = e.new("Lw1")
    e(f"s_cmp_ge_u32 s{S_CT}, 12")
    e(f"s_cbranch_scc1 {lw1}")
    srd(e, SRD_B, P_WQKV, 0, 640 * 3840)
    srd(e, SRD_C, P_WS, WS_QKV, S * 3840)
    e(f"s_mul_i32 s{S_COL0}, s{S_CT}, 160")
    e(f"s_mov_b32 s{S_LDB}, 3840")
    lld = e.new("Lld")
    e(f"s_cmp_ge_u32 s{S_WAVE}, 4")
    e(f"s_cbranch_scc1 {lld}")
    R = Regs(c, 0)
    consumer(e, c, R)
    epi_plain(e, c, R, 3840)
    e.label(lw1)
    srd(e, SRD_B, P_W1, 0, 640 * 1280)
    srd(e, SRD_C, P_WS, WS_HS - 2 * 1280, (S + 4) * 1280)
    e(f"s_sub_u32 s{S_CT}, s{S_CT}, 12")
    e(f"s_mul_i32 s{S_COL0}, s{S_CT}, 160")
    e(f"s_mov_b32 s{S_LDB}, 1280")
    e(f"s_cmp_ge_u32 s{S_WAVE}, 4")
    e(f"s_cbranch_scc1 {lld}")
    R = Regs(c, 7)
    SUM, SQ, CS = R.EX, R.EX + 8, R.EX + 16

    def extras(e, s):
        X, W = R.R[s]
        blocks = []
        for w in range(4):
            wm, wn = w >> 1, w & 1
            b = []
            for a in range(2):
                x = X + 4 * (2 * wn + a)
                b.append(f"v_mfma_f32_16x16x32_bf16 {vr(SUM+4*a,4)}, {vr(R.ONES,4)}, {vr(x,4)}, {vr(SUM+4*a,4)}")
                b.append(f"v_mfma_f32_16x16x32_bf16 {vr(SQ+4*a,4)}, {vr(x,4)}, {vr(x,4)}, {vr(SQ+4*a,4)}")
            for u in range(3 if wm == 0 else 2):
                t = 3 * wm + u
                b.append(f"v_mfma_f32_16x16x32_bf16 {vr(CS+4*u,4)}, {vr(W+4*t,4)}, {vr(R.ONES,4)}, {vr(CS+4*u,4)}")
            blocks.append(b)
        per_wave_blocks(e, blocks)

    consumer(e, c, R, extras)
    SCRB = (c.NS % c.NBUF) * c.BUFSZ
    SCR = 0
    e(f"s_lshr_b32 s{S_T0}, s{S_WAVE}, 1")
    e(f"s_and_b32 s{S_T1}, s{S_WAVE}, 1")
    e(f"v_and_b32 v4, 3, v{VJ}")
    e(f"v_cmp_eq_u32 s[{S_M1}:{S_M1+1}], 1, v4")
    e(f"v_cmp_eq_u32 s[{S_M2}:{S_M2+1}], 2, v4")
    e(f"v_cmp_eq_u32 s[{S_M3}:{S_M3+1}], 3, v4")
    e(f"v_lshrrev_b32 v5, 2, v{VJ}")
    e(f"v_cmp_eq_u32 s[{S_M0}:{S_M0+1}], v5, v{VG}")
    e(f"s_lshl_b32 s{S_T2}, s{S_T0}, 6")
    e(f"s_lshl_b32 s{S_T3}, s{S_T1}, 5")
    e(f"s_add_u32 s{S_T2}, s{S_T2}, s{S_T3}")
    e(f"v_add_u32 v6, s{S_T2}, v{VJ}")
    e(f"v_lshlrev_b32 v6, 3, v6")
    e(f"v_add_u32 v6, {SCRB}, v6")
    T = R.R[0][0]
    for a in range(2):
        q = SQ + 4 * a
        e(f"v_cndmask_b32 v{T+2*a+1}, v{q}, v{q+1}, s[{S_M1}:{S_M1+1}]")
        e(f"v_cndmask_b32 v{T+2*a+1}, v{T+2*a+1}, v{q+2}, s[{S_M2}:{S_M2+1}]")
        e(f"v_cndmask_b32 v{T+2*a+1}, v{T+2*a+1}, v{q+3}, s[{S_M3}:{S_M3+1}]")
        e(f"v_mov_b32 v{T+2*a}, v{SUM+4*a}")
    e(f"s_mov_b64 exec, s[{S_M0}:{S_M0+1}]")
    for a in range(2):
        e(f"ds_write_b64 v6, {vr(T+2*a,2)} offset:{SCR + a*128}")
    e("s_mov_b64 exec, -1")
    e(f"v_cmp_eq_u32 s[{S_M0}:{S_M0+1}], 0, v{VJ}")
    e(f"s_mul_i32 s{S_T2}, s{S_T1}, 5")
    e(f"s_mul_i32 s{S_T3}, s{S_T0}, 3")
    e(f"s_add_u32 s{S_T2}, s{S_T2}, s{S_T3}")
    e(f"s_lshl_b32 s{S_T2}, s{S_T2}, 6")
    e(f"s_add_u32 s{S_T2}, s{S_T2}, {SCRB}")
    e(f"v_lshl_add_u32 v6, v{VG}, 4, s{S_T2}")
    e(f"s_cmp_eq_u32 s{S_T0}, 1")
    e(f"s_cselect_b32 s{S_T3}, {SCRB + 15*64 - 128}, s{S_T2}")
    e(f"v_lshl_add_u32 v7, v{VG}, 4, s{S_T3}")
    e(f"s_mov_b64 exec, s[{S_M0}:{S_M0+1}]")
    e(f"ds_write_b128 v6, {vr(CS,4)} offset:{SCR+1024}")
    e(f"ds_write_b128 v6, {vr(CS+4,4)} offset:{SCR+1024+64}")
    e(f"ds_write_b128 v7, {vr(CS+8,4)} offset:{SCR+1024+128}")
    e("s_mov_b64 exec, -1")
    e("s_waitcnt lgkmcnt(0)")
    e("s_barrier")
    ST = R.R[1][0]
    CSR = ST + 8
    e(f"s_lshl_b32 s{S_T2}, s{S_T0}, 9")
    e(f"s_add_u32 s{S_T2}, s{S_T2}, {SCRB}")
    e(f"v_lshl_add_u32 v6, v{VJ}, 3, s{S_T2}")
    for i in range(4):
        e(f"ds_read_b64 {vr(ST+2*i,2)}, v6 offset:{SCR + i*128}")
    e(f"s_mul_i32 s{S_T2}, s{S_T1}, 320")
    e(f"s_add_u32 s{S_T2}, s{S_T2}, {SCRB}")
    e(f"v_lshl_add_u32 v7, v{VG}, 4, s{S_T2}")
    for t in range(5):
        e(f"ds_read_b128 {vr(CSR+4*t,4)}, v7 offset:{SCR+1024+t*64}")
    e(f"s_cmp_eq_u32 s{S_CT}, 0")
    e(f"s_cselect_b32 s{S_K2}, 3, 0")
    e(f"s_cmp_eq_u32 s{S_CT}, 1")
    e(f"s_cselect_b32 s{S_K2}, 1, s{S_K2}")
    e(f"s_cmp_eq_u32 s{S_CT}, 2")
    e(f"s_cselect_b32 s{S_K2}, 4, s{S_K2}")
    VS = 12
    store_addr(e, c, VS, 1280, f"s{S_K2}")
    e(f"v_mov_b32 v{VK0}, {hex(f32bits(-GELU_C0))}")
    e(f"s_mov_b32 s{S_K1}, {hex(f32bits(-GELU_C1))}")
    e("s_waitcnt lgkmcnt(0)")
    MB = R.EX
    for i in range(4):
        ln_from_sums(e, ST + 2 * i, ST + 2 * i + 1, MB + i, MB + 4 + i, 4)
    k = 0
    for i in range(4):
        for t in range(5):
            pout = T + 8 + 2 * (k % 4); k += 1
            gelu4(e, R.acc(i, t), T, MB + i, MB + 4 + i, CSR + 4 * t, pout)
            e(f"buffer_store_dwordx2 {vr(pout,2)}, v{VS}, s[{SRD_C}:{SRD_C+3}], s{S_R0+i} offen offset:{t*32}")
    lz = e.new("Lz")
    e(f"s_cmp_lg_u32 s{S_WAVE}, 0")
    e(f"s_cbranch_scc1 {lz}")
    e(f"s_and_b32 s{S_T0}, s{S_CT}, 1")
    e(f"s_mul_i32 s{S_T1}, s{S_T0}, 15")
    e(f"s_cmp_lg_u32 s{S_RB}, s{S_T1}")
    e(f"s_cbranch_scc1 {lz}")
    e(f"s_lshr_b32 s{S_T2}, s{S_CT}, 1")
    e(f"s_add_u32 s{S_T2}, s{S_T2}, 1")
    e(f"s_sub_u32 s{S_T3}, 2050, s{S_T2}")
    e(f"s_cmp_eq_u32 s{S_T0}, 0")
    e(f"s_cselect_b32 s{S_T3}, 2, s{S_T3}")
    e(f"s_mul_i32 s{S_T3}, s{S_T3}, 1280")
    e(f"s_lshl_b32 s{S_T0}, s{S_COL0}, 1")
    e(f"s_add_u32 s{S_T3}, s{S_T3}, s{S_T0}")
    e("v_lshlrev_b32 v4, 3, v1")
    e("v_mov_b32 v6, 0")
    e("v_mov_b32 v7, 0")
    e("v_cmp_gt_u32 vcc, 40, v1")
    e("s_nop 1")
    e("s_mov_b64 exec, vcc")
    e(f"buffer_store_dwordx2 v[6:7], v4, s[{SRD_C}:{SRD_C+3}], s{S_T3} offen")
    e(f"s_cmp_eq_u32 s{S_T2}, 1")
    e(f"s_cbranch_scc1 {lz}")
    e(f"buffer_store_dwordx2 v[6:7], v4, s[{SRD_C}:{SRD_C+3}], s{S_T3} offen offset:1280")
    e.label(lz)
    e("s_endpgm")
    e.label(lld)
    loader(e, c, ldb_sgpr=S_LDB)
    e.label(end)
    e("s_endpgm")
    return name, R.END, c.NBUF * c.BUFSZ


def xreduce(e, regs, t0, t1):
    for op in ("v_permlane32_swap_b32", "v_permlane16_swap_b32"):
        for r in regs:
            e(f"v_mov_b32 v{t0}, v{r}")
            e(f"v_mov_b32 v{t1}, v{r}")
            e("s_nop 1")
            e(f"{op} v{t0}, v{t1}")
            e("s_nop 0")
            e(f"v_add_f32 v{r}, v{t0}, v{t1}")


def stage2(e):
    name = "k2_kernel"
    end = kernel_head(e, name, 256)
    c = Cfg(128, 80, 640, 192, 5, 4, 1, 1280, 1280)
    e("s_and_b32 s3, s2, 7")
    e("s_lshr_b32 s4, s2, 3")
    latt = e.new("Latt")
    e("s_cmp_ge_u32 s4, 16")
    e(f"s_cbranch_scc1 {latt}")
    e("s_lshl_b32 s5, s3, 1")
    e("s_lshr_b32 s6, s4, 3")
    e(f"s_add_u32 s{S_RB}, s5, s6")
    e(f"s_and_b32 s{S_CT}, s4, 7")
    e(f"s_lshl_b32 s{S_ROW0}, s{S_RB}, 7")
    e(f"s_mul_i32 s{S_COL0}, s{S_CT}, 80")
    e("s_waitcnt lgkmcnt(0)")
    srd(e, SRD_A, P_WS, WS_HS, S * 1280)
    srd(e, SRD_B, P_W2, 0, 640 * 1280)
    srd(e, SRD_C, P_WS, WS_X1, S * 1280)
    srd(e, SRD_D, P_X, 0, S * 1280)
    srd(e, SRD_E, P_GW, 0, 1280)
    srd(e, SRD_F, P_WS, WS_PART, S * 128)
    lld = e.new("Lld")
    e(f"s_cmp_ge_u32 s{S_WAVE}, 4")
    e(f"s_cbranch_scc1 {lld}")
    R = Regs(c, 8)
    XR, GR = R.EX, R.EX + 20
    VS = 12

    def pre(e):
        store_addr(e, c, VS, 1280)
        for i in range(2):
            for t in range(5):
                e(f"buffer_load_dwordx2 {vr(XR+2*(i*5+t),2)}, v{VS}, s[{SRD_D}:{SRD_D+3}], s{S_R0+i} offen offset:{t*32}")
        e(f"s_lshl_b32 s{S_T3}, s{S_COL0}, 1")
        e(f"v_lshl_add_u32 v5, v{VG}, 3, s{S_T3}")
        for t in range(5):
            e(f"buffer_load_dwordx2 {vr(GR+2*t,2)}, v5, s[{SRD_E}:{SRD_E+3}], 0 offen offset:{t*32}")

    consumer(e, c, R, None, pre)
    e("s_waitcnt vmcnt(0)")
    T = R.R[0][0]
    PS = R.R[1][0]
    for i in range(2):
        for r in range(4):
            e(f"v_mov_b32 v{PS+4*i+r}, 0")
    k = 0
    for i in range(2):
        for t in range(5):
            a = R.acc(i, t)
            x = XR + 2 * (i * 5 + t)
            g = GR + 2 * t
            pout = T + 16 + 2 * (k % 4); k += 1
            e(f"v_cvt_pk_bf16_f32 v{T+4}, v{a}, v{a+1}")
            e(f"v_cvt_pk_bf16_f32 v{T+5}, v{a+2}, v{a+3}")
            e(f"v_lshlrev_b32 v{T}, 16, v{T+4}")
            e(f"v_and_b32 v{T+1}, 0xffff0000, v{T+4}")
            e(f"v_lshlrev_b32 v{T+2}, 16, v{T+5}")
            e(f"v_and_b32 v{T+3}, 0xffff0000, v{T+5}")
            e(f"v_lshlrev_b32 v{T+4}, 16, v{x}")
            e(f"v_and_b32 v{T+5}, 0xffff0000, v{x}")
            e(f"v_lshlrev_b32 v{T+6}, 16, v{x+1}")
            e(f"v_and_b32 v{T+7}, 0xffff0000, v{x+1}")
            for r in range(4):
                e(f"v_add_f32 v{T+r}, v{T+r}, v{T+4+r}")
            e(f"v_cvt_pk_bf16_f32 v{pout}, v{T}, v{T+1}")
            e(f"v_cvt_pk_bf16_f32 v{pout+1}, v{T+2}, v{T+3}")
            e(f"buffer_store_dwordx2 {vr(pout,2)}, v{VS}, s[{SRD_C}:{SRD_C+3}], s{S_R0+i} offen offset:{t*32}")
            e(f"v_lshlrev_b32 v{T}, 16, v{pout}")
            e(f"v_and_b32 v{T+1}, 0xffff0000, v{pout}")
            e(f"v_lshlrev_b32 v{T+2}, 16, v{pout+1}")
            e(f"v_and_b32 v{T+3}, 0xffff0000, v{pout+1}")
            for r in range(4):
                e(f"v_add_f32 v{PS+4*i}, v{PS+4*i}, v{T+r}")
                e(f"v_fmac_f32 v{PS+4*i+1}, v{T+r}, v{T+r}")
            e(f"v_lshlrev_b32 v{T+8}, 16, v{g}")
            e(f"v_and_b32 v{T+9}, 0xffff0000, v{g}")
            e(f"v_lshlrev_b32 v{T+10}, 16, v{g+1}")
            e(f"v_and_b32 v{T+11}, 0xffff0000, v{g+1}")
            for r in range(4):
                e(f"v_mul_f32 v{T+8+r}, v{T+8+r}, v{T+4+r}")
            e(f"v_cvt_pk_bf16_f32 v{T+12}, v{T+8}, v{T+9}")
            e(f"v_cvt_pk_bf16_f32 v{T+13}, v{T+10}, v{T+11}")
            e(f"v_lshlrev_b32 v{T+8}, 16, v{T+12}")
            e(f"v_and_b32 v{T+9}, 0xffff0000, v{T+12}")
            e(f"v_lshlrev_b32 v{T+10}, 16, v{T+13}")
            e(f"v_and_b32 v{T+11}, 0xffff0000, v{T+13}")
            for r in range(4):
                e(f"v_add_f32 v{PS+4*i+2}, v{PS+4*i+2}, v{T+8+r}")
    xreduce(e, [PS, PS + 1, PS + 2, PS + 4, PS + 5, PS + 6], T, T + 1)
    e(f"s_lshl_b32 s{S_T2}, s{S_WAVE}, 5")
    e(f"s_add_u32 s{S_T2}, s{S_T2}, s{S_ROW0}")
    e(f"v_add_u32 v4, s{S_T2}, v{VJ}")
    e(f"s_lshl_b32 s{S_T3}, s{S_CT}, 4")
    e(f"v_lshl_add_u32 v4, v4, 7, s{S_T3}")
    e("s_mov_b64 exec, 0xffff")
    e(f"buffer_store_dwordx4 {vr(PS,4)}, v4, s[{SRD_F}:{SRD_F+3}], 0 offen")
    e(f"buffer_store_dwordx4 {vr(PS+4,4)}, v4, s[{SRD_F}:{SRD_F+3}], 0 offen offset:2048")
    e("s_endpgm")
    e.label(lld)
    loader(e, c)

    e.label(latt)
    e("s_sub_u32 s4, s4, 16")
    e("s_lshl_b32 s5, s3, 4")
    e("s_add_u32 s5, s5, s4")
    e(f"s_lshl_b32 s{S_ROW0}, s5, 4")
    e("s_waitcnt lgkmcnt(0)")
    srd(e, SRD_A, P_WS, WS_QKV, S * 3840)
    srd(e, SRD_C, P_WS, WS_O, S * 1280)
    e("v_and_b32 v1, 63, v0")
    e(f"s_sub_u32 s{S_T0}, s{S_ROW0}, 14")
    e(f"s_mul_i32 s{S_T0}, s{S_T0}, 3840")
    e(f"s_lshl_b32 s{S_T1}, s{S_WAVE}, 10")
    e(f"s_add_u32 s{S_T0}, s{S_T0}, s{S_T1}")
    e(f"v_lshl_add_u32 v2, v1, 4, s{S_T0}")
    e("v_bfrev_b32 v7, 1")
    e(f"s_mov_b32 s{S_MA}, s{S_T1}")
    for i in range(15):
        e(f"v_cmp_gt_i32 vcc, 0, v2")
        e(f"s_mov_b32 m0, s{S_MA}")
        e("s_nop 0")
        e("v_cndmask_b32 v3, v2, v7, vcc")
        if i == 14:
            lsk = e.new("Lsk")
            e(f"s_cmp_lg_u32 s{S_WAVE}, 0")
            e(f"s_cbranch_scc1 {lsk}")
        e(f"buffer_load_dwordx4 v3, s[{SRD_A}:{SRD_A+3}], 0 offen lds")
        if i == 14:
            e.label(lsk)
        else:
            e("v_add_u32 v2, 0x2000, v2")
            e(f"s_add_u32 s{S_MA}, s{S_MA}, 0x2000")
    e("v_lshrrev_b32 v4, 5, v0")
    e("v_and_b32 v5, 31, v0")
    e("v_mul_u32_u24 v6, 40, v5")
    e("v_mul_u32_u24 v8, 3840, v4")
    e("v_add_u32 v8, v8, v6")
    e(f"v_add_u32 v9, s{S_ROW0}, v4")
    e("s_waitcnt vmcnt(0)")
    e("s_barrier")
    Q, KK, LG = 16, 32, 112
    for d in range(5):
        e(f"ds_read_b64 {vr(Q+2*d,2)}, v8 offset:{14*3840 + 8*d}")
    for w in range(8):
        for d in range(5):
            e(f"ds_read_b64 {vr(KK+10*w+2*d,2)}, v8 offset:{(14-2*w)*3840 + 1280 + 8*d}")
        if w % 2 == 1:
            e("s_waitcnt lgkmcnt(0)")
            for ww in (w - 1, w):
                e(f"v_mov_b32 v{LG+ww}, 0")
                for d in range(10):
                    e(f"v_dot2_f32_bf16 v{LG+ww}, v{Q+d}, v{KK+10*ww+d}, v{LG+ww}")
    e.nop(4)
    vreads = []
    for w in range(8):
        for d in range(5):
            vreads.append(f"ds_read_b64 {vr(KK+10*w+2*d,2)}, v8 offset:{(14-2*w)*3840 + 2560 + 8*d}")
    for r in vreads[:15]:
        e(r)
    e(f"s_mov_b32 s{S_K0}, {hex(f32bits(20 ** -0.5))}")
    e(f"v_mov_b32 v10, {hex(f32bits(-1e9) & 0xffff0000)}")
    for w in range(8):
        bf16r(e, LG + w, LG + w)
        e(f"v_mul_f32 v{LG+w}, s{S_K0}, v{LG+w}")
        bf16r(e, LG + w, LG + w)
        if w:
            e(f"v_cmp_gt_u32 vcc, {2*w}, v9")
            e("s_nop 1")
            e(f"v_cndmask_b32 v{LG+w}, v{LG+w}, v10, vcc")
    e(f"v_max3_f32 v11, v{LG}, v{LG+1}, v{LG+2}")
    e(f"v_max3_f32 v11, v11, v{LG+3}, v{LG+4}")
    e(f"v_max3_f32 v11, v11, v{LG+5}, v{LG+6}")
    e(f"v_max_f32 v11, v11, v{LG+7}")
    e(f"s_mov_b32 s{S_K1}, {hex(f32bits(1.4426950408889634))}")
    for w in range(8):
        e(f"v_sub_f32 v{LG+w}, v{LG+w}, v11")
        e(f"v_mul_f32 v{LG+w}, s{S_K1}, v{LG+w}")
        e(f"v_exp_f32 v{LG+w}, v{LG+w}")
    e("s_waitcnt lgkmcnt(0)")
    for r in vreads[15:30]:
        e(r)
    e(f"v_add_f32 v12, v{LG}, v{LG+1}")
    for w in range(2, 8):
        e(f"v_add_f32 v12, v12, v{LG+w}")
    e("v_rcp_f32 v12, v12")
    e("s_nop 0")
    for w in range(8):
        e(f"v_mul_f32 v{LG+w}, v{LG+w}, v12")
    PP = 120
    for w in range(4):
        e(f"v_cvt_pk_bf16_f32 v{PP+w}, v{LG+2*w}, v{LG+2*w+1}")
    e("s_waitcnt lgkmcnt(0)")
    for r in vreads[30:]:
        e(r)
    e(f"s_mov_b32 s{S_K2}, 0x05040100")
    e(f"s_mov_b32 s{S_K3}, 0x07060302")
    O = 124
    for r in range(20):
        e(f"v_mov_b32 v{O+r}, 0")
    for wp in range(4):
        if wp == 3:
            e("s_waitcnt lgkmcnt(0)")
        a, b = KK + 10 * (2 * wp), KK + 10 * (2 * wp + 1)
        for d in range(10):
            e(f"v_perm_b32 v{Q+(d%2)*2}, v{b+d}, v{a+d}, s{S_K2}")
            e(f"v_perm_b32 v{Q+(d%2)*2+1}, v{b+d}, v{a+d}, s{S_K3}")
            e(f"v_dot2_f32_bf16 v{O+2*d}, v{Q+(d%2)*2}, v{PP+wp}, v{O+2*d}")
            e(f"v_dot2_f32_bf16 v{O+2*d+1}, v{Q+(d%2)*2+1}, v{PP+wp}, v{O+2*d+1}")
    e.nop(4)
    for d in range(10):
        e(f"v_cvt_pk_bf16_f32 v{KK+d}, v{O+2*d}, v{O+2*d+1}")
    e(f"s_mov_b32 s{S_T2}, 1280")
    e(f"v_mad_u32_u24 v13, v9, s{S_T2}, v6")
    e(f"buffer_store_dwordx4 {vr(KK,4)}, v13, s[{SRD_C}:{SRD_C+3}], 0 offen")
    e(f"buffer_store_dwordx4 {vr(KK+4,4)}, v13, s[{SRD_C}:{SRD_C+3}], 0 offen offset:16")
    e(f"buffer_store_dwordx2 {vr(KK+8,2)}, v13, s[{SRD_C}:{SRD_C+3}], 0 offen offset:32")
    e.label(end)
    e("s_endpgm")
    return name, max(R.END, 144), max(c.NBUF * c.BUFSZ, 116 * 1024)


def load_partials(e, c, dst):
    e(f"s_mul_i32 s{S_T2}, s{S_WAVE}, {c.mt*16}")
    e(f"s_add_u32 s{S_T2}, s{S_T2}, s{S_ROW0}")
    e(f"v_add_u32 v4, s{S_T2}, v{VJ}")
    e("v_lshlrev_b32 v4, 7, v4")
    e(f"v_lshl_add_u32 v4, v{VG}, 5, v4")
    for i in range(c.mt):
        e(f"buffer_load_dwordx4 {vr(dst+8*i,4)}, v4, s[{SRD_F}:{SRD_F+3}], 0 offen offset:{i*2048}")
        e(f"buffer_load_dwordx4 {vr(dst+8*i+4,4)}, v4, s[{SRD_F}:{SRD_F+3}], 0 offen offset:{i*2048+16}")


def stage3(e):
    name = "k3_kernel"
    end = kernel_head(e, name, 256)
    c3 = Cfg(128, 144, 640, 320, 4, 4, 1, 1280, 3456)
    co = Cfg(128, 160, 640, 320, 4, 2, 2, 1280, 1280)
    e("s_and_b32 s3, s2, 7")
    e("s_lshr_b32 s4, s2, 3")
    e("s_lshr_b32 s5, s3, 2")
    e("s_and_b32 s3, s3, 3")
    e("s_and_b32 s6, s4, 7")
    e("s_lshl_b32 s5, s5, 3")
    e(f"s_add_u32 s{S_RB}, s5, s6")
    e("s_lshr_b32 s4, s4, 3")
    e("s_lshl_b32 s4, s4, 2")
    e(f"s_add_u32 s{S_CT}, s4, s3")
    e(f"s_lshl_b32 s{S_ROW0}, s{S_RB}, 7")
    e("s_waitcnt lgkmcnt(0)")
    lwo = e.new("Lwo")
    e(f"s_cmp_ge_u32 s{S_CT}, 12")
    e(f"s_cbranch_scc1 {lwo}")
    srd(e, SRD_A, P_WS, WS_X1, S * 1280)
    srd(e, SRD_B, P_W3, 0, 640 * 3456)
    srd(e, SRD_C, P_WS, WS_H3, S * 3456)
    srd(e, SRD_F, P_WS, WS_PART, S * 128)
    e(f"s_mul_i32 s{S_COL0}, s{S_CT}, 144")
    lld3 = e.new("Lld")
    e(f"s_cmp_ge_u32 s{S_WAVE}, 4")
    e(f"s_cbranch_scc1 {lld3}")
    c = c3
    R = Regs(c, 7)
    CS, PR = R.EX, R.EX + 12

    def extras(e, s):
        X, W = R.R[s]
        blocks = []
        for w in range(4):
            b = []
            for u in range(3 if w == 0 else 2):
                t = w + 4 * u
                b.append(f"v_mfma_f32_16x16x32_bf16 {vr(CS+4*u,4)}, {vr(W+4*t,4)}, {vr(R.ONES,4)}, {vr(CS+4*u,4)}")
            blocks.append(b)
        per_wave_blocks(e, blocks)

    def pre(e):
        load_partials(e, c, PR)

    consumer(e, c, R, extras, pre)
    SCRB = (c.NS % c.NBUF) * c.BUFSZ
    SCR = 0
    T = R.R[0][0]
    e(f"v_cmp_eq_u32 s[{S_M0}:{S_M0+1}], 0, v{VJ}")
    e(f"s_lshl_b32 s{S_T2}, s{S_WAVE}, 6")
    e(f"s_add_u32 s{S_T2}, s{S_T2}, {SCRB}")
    e(f"v_lshl_add_u32 v6, v{VG}, 4, s{S_T2}")
    e(f"s_mov_b64 exec, s[{S_M0}:{S_M0+1}]")
    for u in range(3):
        e(f"ds_write_b128 v6, {vr(CS+4*u,4)} offset:{SCR + u*256}")
    e("s_mov_b64 exec, -1")
    e("s_waitcnt vmcnt(0) lgkmcnt(0)")
    e("s_barrier")
    CSR = R.R[1][0]
    e(f"v_lshlrev_b32 v7, 4, v{VG}")
    e(f"v_add_u32 v7, {SCRB}, v7")
    for t in range(9):
        e(f"ds_read_b128 {vr(CSR+4*t,4)}, v7 offset:{SCR + t*64}")
    for i in range(2):
        e(f"v_add_f32 v{PR+8*i}, v{PR+8*i}, v{PR+8*i+4}")
        e(f"v_add_f32 v{PR+8*i+1}, v{PR+8*i+1}, v{PR+8*i+5}")
    xreduce(e, [PR, PR + 1, PR + 8, PR + 9], T, T + 1)
    MB = CS
    for i in range(2):
        ln_from_sums(e, PR + 8 * i, PR + 8 * i + 1, MB + i, MB + 2 + i, 4)
    VS = 12
    store_addr(e, c, VS, 3456)
    e(f"v_mov_b32 v{VK0}, {hex(f32bits(-GELU_C0))}")
    e(f"s_mov_b32 s{S_K1}, {hex(f32bits(-GELU_C1))}")
    e("s_waitcnt lgkmcnt(0)")
    k = 0
    for i in range(2):
        for t in range(9):
            pout = T + 8 + 2 * (k % 4); k += 1
            gelu4(e, R.acc(i, t), T, MB + i, MB + 2 + i, CSR + 4 * t, pout)
            e(f"buffer_store_dwordx2 {vr(pout,2)}, v{VS}, s[{SRD_C}:{SRD_C+3}], s{S_R0+i} offen offset:{t*32}")
    e("s_endpgm")
    e.label(lld3)
    loader(e, c3)
    vend = R.END
    e.label(lwo)
    srd(e, SRD_A, P_WS, WS_O, S * 1280)
    srd(e, SRD_B, P_WO, 0, 640 * 1280)
    srd(e, SRD_C, P_WS, WS_AO, S * 1280)
    e(f"s_sub_u32 s{S_CT}, s{S_CT}, 12")
    e(f"s_mul_i32 s{S_COL0}, s{S_CT}, 160")
    lldo = e.new("Lld")
    e(f"s_cmp_ge_u32 s{S_WAVE}, 4")
    e(f"s_cbranch_scc1 {lldo}")
    R = Regs(co, 0)
    consumer(e, co, R)
    epi_plain(e, co, R, 1280)
    e.label(lldo)
    loader(e, co)
    e.label(end)
    e("s_endpgm")
    return name, max(vend, R.END), c3.NBUF * c3.BUFSZ


def stage4(e):
    name = "k4_kernel"
    end = kernel_head(e, name, 256)
    c = Cfg(64, 80, 1728, 192, 8, 4, 1, 3456, 1280)
    e("s_and_b32 s3, s2, 7")
    e("s_lshr_b32 s4, s2, 3")
    e("s_lshl_b32 s5, s3, 2")
    e("s_lshr_b32 s6, s4, 3")
    e(f"s_add_u32 s{S_RB}, s5, s6")
    e(f"s_and_b32 s{S_CT}, s4, 7")
    e(f"s_lshl_b32 s{S_ROW0}, s{S_RB}, 6")
    e(f"s_mul_i32 s{S_COL0}, s{S_CT}, 80")
    e("s_waitcnt lgkmcnt(0)")
    srd(e, SRD_A, P_WS, WS_H3, S * 3456)
    srd(e, SRD_B, P_W4, 0, F * 1280)
    srd(e, SRD_C, P_OUT, 0, S * 1280)
    srd(e, SRD_D, P_WS, WS_X1, S * 1280)
    srd(e, SRD_E, P_WS, WS_AO, S * 1280)
    srd(e, SRD_F, P_WS, WS_PART, S * 128)
    lld = e.new("Lld")
    e(f"s_cmp_ge_u32 s{S_WAVE}, 4")
    e(f"s_cbranch_scc1 {lld}")
    R = Regs(c, 7)
    XR, AR, PR = R.EX, R.EX + 10, R.EX + 20
    VS = 12

    def pre(e):
        store_addr(e, c, VS, 1280)
        for t in range(5):
            e(f"buffer_load_dwordx2 {vr(XR+2*t,2)}, v{VS}, s[{SRD_D}:{SRD_D+3}], 0 offen offset:{t*32}")
            e(f"buffer_load_dwordx2 {vr(AR+2*t,2)}, v{VS}, s[{SRD_E}:{SRD_E+3}], 0 offen offset:{t*32}")
        load_partials(e, c, PR)

    consumer(e, c, R, None, pre)
    e("s_waitcnt vmcnt(0)")
    T = R.R[0][0]
    e(f"v_add_f32 v{PR+2}, v{PR+2}, v{PR+6}")
    xreduce(e, [PR + 2], T, T + 1)
    G, OMG = PR, PR + 1
    bf16r(e, G, PR + 2)
    e(f"v_mul_f32 v{G}, {hex(f32bits(-1.4426950408889634))}, v{G}")
    e(f"v_exp_f32 v{G}, v{G}")
    e("s_nop 0")
    e(f"v_add_f32 v{G}, 1.0, v{G}")
    e(f"v_rcp_f32 v{G}, v{G}")
    e("s_nop 0")
    bf16r(e, G, G)
    e(f"v_sub_f32 v{OMG}, 1.0, v{G}")
    bf16r(e, OMG, OMG)

    def unpack(d, s):
        e(f"v_lshlrev_b32 v{d}, 16, v{s}")
        e(f"v_and_b32 v{d+1}, 0xffff0000, v{s}")
        e(f"v_lshlrev_b32 v{d+2}, 16, v{s+1}")
        e(f"v_and_b32 v{d+3}, 0xffff0000, v{s+1}")

    def rnd4(d, t):
        e(f"v_cvt_pk_bf16_f32 v{t}, v{d}, v{d+1}")
        e(f"v_cvt_pk_bf16_f32 v{t+1}, v{d+2}, v{d+3}")
        unpack(d, t)

    for t in range(5):
        a = R.acc(0, t)
        pout = T + 12 + 2 * (t % 4)
        rnd4(a, T + 8)
        unpack(T, XR + 2 * t)
        for r in range(4):
            e(f"v_add_f32 v{a+r}, v{a+r}, v{T+r}")
        rnd4(a, T + 8)
        for r in range(4):
            e(f"v_mul_f32 v{a+r}, v{a+r}, v{OMG}")
        rnd4(a, T + 8)
        unpack(T, AR + 2 * t)
        for r in range(4):
            e(f"v_mul_f32 v{T+r}, v{T+r}, v{G}")
        rnd4(T, T + 8)
        for r in range(4):
            e(f"v_add_f32 v{a+r}, v{a+r}, v{T+r}")
        e(f"v_cvt_pk_bf16_f32 v{pout}, v{a}, v{a+1}")
        e(f"v_cvt_pk_bf16_f32 v{pout+1}, v{a+2}, v{a+3}")
        e(f"buffer_store_dwordx2 {vr(pout,2)}, v{VS}, s[{SRD_C}:{SRD_C+3}], 0 offen offset:{t*32}")
    e("s_endpgm")
    e.label(lld)
    loader(e, c)
    e.label(end)
    e("s_endpgm")
    return name, R.END, c.NBUF * c.BUFSZ


def main():
    e = E()
    ks = [stage1(e), stage2(e), stage3(e), stage4(e)]
    head = open("cdna_kernels/" + NAME + ".s.ref").read().split("; Override launch")[0]
    out = head
    out += f"; WS qkv {WS_QKV} 2048 1920\n"
    for n, v, l in ks:
        out += f"; @launch kernel={n} grid=(256,1,1) block=(512,1,1) lds={l}\n"
    out += '.amdgcn_target "amdgcn-amd-amdhsa--gfx950"\n.text\n'
    out += "\n".join(e.L) + "\n"
    out += '.section .rodata,"a"\n'
    for n, v, l in ks:
        assert v <= 256, (n, v)
        out += kd(n, v)
    path = sys.argv[1] if len(sys.argv) > 1 else "cdna_kernels/" + NAME + ".s"
    open(path, "w").write(out)
    print("wrote", path, [(n, v, l) for n, v, l in ks])


main()
```

```python
import sys, struct, os
OPT = set(os.environ.get('OPT', '').split(','))

NAME = "gated_mix__sliding_local_dilated__mixer_s_mlp__prompt"
S, D, F = 2048, 640, 1728

WS_QKV = 0
WS_HS = 0x800000 + 0x1000
WS_O = 0xB00000
WS_X1 = 0xE00000
WS_AO = 0x1100000
WS_H3 = 0x1400000
WS_PART = 0x1C00000
WS_G = 0x1D00000
WS_FLAG = 0x1E00000
PERSIST = 'multi' not in OPT
SC = " sc1" if PERSIST else ""


def f32bits(x):
    return struct.unpack("<I", struct.pack("<f", x))[0]


class E:
    def __init__(self):
        self.L = []
        self.n = 0

    def __call__(self, s):
        self.L.append("    " + s)

    def label(self, l):
        self.L.append(l + ":")

    def new(self, p="L"):
        self.n += 1
        return f"{p}_{self.n}"

    def nop(self, n):
        while n > 0:
            k = min(n, 16)
            self(f"s_nop {k-1}")
            n -= k

    def c(self, s):
        self.L.append("    ; " + s)


def vr(a, n=1):
    return f"v{a}" if n == 1 else f"v[{a}:{a+n-1}]"


P_X, P_WQKV, P_WO, P_BX, P_W1, P_W2, P_W3, P_W4 = 16, 18, 20, 22, 24, 26, 28, 30
P_GW, P_OUT, P_DBG, P_WS = 32, 34, 36, 38
SRD_A, SRD_B, SRD_C, SRD_D, SRD_E, SRD_F = 40, 44, 48, 52, 56, 60
S_ROW0, S_COL0, S_WAVE, S_KA, S_KB, S_BUF, S_CNT = 64, 65, 66, 67, 68, 69, 70
S_T0, S_T1, S_T2, S_T3 = 71, 72, 73, 74
S_MA, S_MB, S_RB, S_CT, S_WL = 75, 76, 77, 78, 79
S_M0, S_M1, S_M2, S_M3 = 80, 82, 84, 86
S_K0, S_K1, S_K2, S_K3 = 88, 89, 90, 91
SRD_P = 92
S_XCD, S_SLOT = 96, 97
S_TAG = 98
S_FIDX = 15
SRD = lambda d: f"s[{d}:{d+3}]"


def srd(e, d, ptr, off, nbytes):
    if off:
        e(f"s_add_u32 s{d}, s{ptr}, {off}")
        e(f"s_addc_u32 s{d+1}, s{ptr+1}, 0")
    else:
        e(f"s_mov_b32 s{d}, s{ptr}")
        e(f"s_mov_b32 s{d+1}, s{ptr+1}")
    e(f"s_mov_b32 s{d+2}, {nbytes}")
    e(f"s_mov_b32 s{d+3}, 0x00020000")


WS_STAMP = 0x1F00000
PHASE = [0]


def stamp(e, idx):
    if 'stamp' not in OPT: return
    e("s_memtime s[100:101]")
    e("s_waitcnt lgkmcnt(0)")
    e(f"s_mov_b32 s{8+idx}, s100")


def stamp_flush(e, n):
    if 'stamp' not in OPT: return
    e("s_waitcnt vmcnt(0)")
    stamp(e, n)
    l = e.new("Lst")
    e(f"s_cmp_lg_u32 s{S_WAVE}, 0")
    e(f"s_cbranch_scc1 {l}")
    srd(e, SRD_P, P_WS, WS_STAMP, 256 * 128)
    e("s_lshl_b32 s100, s2, 7")
    e("s_mov_b64 exec, 1")
    e("v_mov_b32 v4, s100")
    for i in range(n + 1):
        e(f"v_mov_b32 v5, s{8+i}")
        e(f"buffer_store_dword v5, v4, {SRD(SRD_P)}, 0 offen offset:{32*PHASE[0] + 4*i}")
    e("s_mov_b64 exec, -1")
    e.label(l)


def phase_end(e, nxt):
    if not PERSIST or nxt is None:
        e("s_endpgm")
        return
    e(f"s_branch {nxt}_pub")


def publish(e, nxt, first):
    e.label(f"{nxt}_pub")
    e("s_waitcnt vmcnt(0)")
    e("s_barrier")
    l = e.new("Lpub")
    e(f"s_cmp_lg_u32 s{S_WAVE}, 4")
    e(f"s_cbranch_scc1 {l}")
    if first:
        srd(e, SRD_P, P_DBG, 0, 256)
        lp = e.new("Ltag")
        e("v_mov_b32 v4, 0")
        e(f"s_mov_b32 s{S_CNT}, 0")
        e.label(lp)
        e(f"buffer_load_dwordx2 v[6:7], v4, {SRD(SRD_P)}, 0 offen sc1")
        e("s_waitcnt vmcnt(0)")
        e(f"v_readfirstlane_b32 s{S_TAG}, v6")
        e(f"v_readfirstlane_b32 s{S_TAG+1}, v7")
        e(f"s_add_u32 s{S_CNT}, s{S_CNT}, 1")
        e(f"s_cmp_ge_u32 s{S_CNT}, 0x100000")
        lq = e.new("Ltq")
        e(f"s_cbranch_scc1 {lq}")
        e(f"s_cmp_eq_u32 s{S_TAG}, 0")
        e(f"s_cbranch_scc1 {lp}")
        e.label(lq)
    srd(e, SRD_P, P_WS, WS_FLAG, 3 * 256 * 8)
    e(f"s_lshl_b32 s{S_T0}, s{S_FIDX}, 3")
    e(f"v_mov_b32 v4, s{S_T0}")
    e(f"v_mov_b32 v6, s{S_TAG}")
    e(f"v_mov_b32 v7, s{S_TAG+1}")
    e("s_mov_b64 exec, 1")
    e(f"buffer_store_dwordx2 v[6:7], v4, {SRD(SRD_P)}, 0 offen sc1")
    e("s_mov_b64 exec, -1")
    e.label(l)
    e.label(nxt)


def wait_deps(e, addr_fn):
    if not PERSIST:
        return
    l = e.new("Lwd")
    e(f"s_cmp_lg_u32 s{S_WAVE}, 4")
    e(f"s_cbranch_scc1 {l}")
    addr_fn(e)
    e("v_lshlrev_b32 v4, 3, v4")
    srd(e, SRD_P, P_WS, WS_FLAG, 3 * 256 * 8)
    lp = e.new("Lpoll")
    e(f"s_mov_b32 s{S_CNT}, 0")
    e.label(lp)
    e(f"buffer_load_dwordx2 v[6:7], v4, {SRD(SRD_P)}, 0 offen sc1")
    e(f"s_add_u32 s{S_CNT}, s{S_CNT}, 1")
    e(f"s_cmp_ge_u32 s{S_CNT}, 0x100000")
    e(f"s_cbranch_scc1 {l}")
    e("s_waitcnt vmcnt(0)")
    e(f"v_cmp_ne_u32 vcc, s{S_TAG}, v6")
    e(f"v_cmp_ne_u32 s[{S_M0}:{S_M0+1}], s{S_TAG+1}, v7")
    e(f"s_or_b64 vcc, vcc, s[{S_M0}:{S_M0+1}]")
    e(f"s_cbranch_scc1 {lp}")
    e.label(l)
    e("s_barrier")


class Cfg:
    def __init__(self, Tm, Tn, K, SB, NBUF, WM, WN, lda, ldb, ldc, WK=1):
        self.Tm, self.Tn, self.K, self.SB, self.NBUF, self.WM, self.WN, self.WK = Tm, Tn, K, SB, NBUF, WM, WN, WK
        assert WM * WN * WK == 4
        self.swz = {320: [(3, 0)], 192: [(3, 0)], 384: [(1, 0), (3, 1)], 256: [(0, 0), (1, 1), (3, 2)]}[SB]
        self.lda, self.ldb, self.ldc = lda, ldb, ldc
        self.NS = K // 64
        self.NT = Tn // 16
        self.mt = Tm // 16 // WM
        self.nt = self.NT // WN
        self.ABYTES = Tm * 128
        self.BBYTES = 64 * SB
        self.BUFSZ = self.ABYTES + self.BBYTES
        self.nAw = Tm // 8 // 4
        self.nBw = SB // 16 // 4
        self.CPR = SB // 16
        assert self.NBUF * self.BUFSZ <= 163840
        assert K % 64 == 0
        self.RS = Tn * 2 + 16 if WK == 1 else Tn * 4 + 16
        self.CPO = Tn // 8
        self.RW = Tm // 8
        self.NCH = self.RW * self.CPO
        self.NI = -(-self.NCH // 64)
        last = (self.NS - 1) % NBUF
        need = Tm * self.RS * WK + 2048
        lo = last * self.BUFSZ
        hi = (last + 1) * self.BUFSZ
        if NBUF * self.BUFSZ - hi >= need:
            self.SCR = hi
        else:
            assert lo >= need
            self.SCR = 0
        self.STG = self.SCR + 2048


VL, VGO = 232, 238
VX1, VX2, VGT = 212, 220, 228
VBT = 244
NVGPR = 253


def store_addrs(e, c, shift=False):
    M = -(-65536 // c.CPO)
    e(f"s_mul_i32 s{S_T0}, s{S_WAVE}, {c.RW}")
    e(f"s_add_u32 s{S_T1}, s{S_T0}, s{S_ROW0}")
    e(f"s_mul_i32 s{S_T1}, s{S_T1}, {c.ldc}")
    e(f"s_lshl_b32 s{S_T2}, s{S_COL0}, 1")
    e(f"s_add_u32 s{S_T1}, s{S_T1}, s{S_T2}")
    e(f"s_mul_i32 s{S_T0}, s{S_T0}, {c.RS}")
    e(f"s_add_u32 s{S_T0}, s{S_T0}, {c.STG}")
    e(f"s_mov_b32 s{S_T2}, {M}")
    e(f"s_mov_b32 s{S_T3}, {c.ldc}")
    if shift:
        e(f"s_mov_b32 s{S_K2}, 0x0413")
    for it in range(c.NI):
        if it:
            e(f"v_add_u32 v4, {64*it}, v1")
        else:
            e("v_mov_b32 v4, v1")
        e(f"v_mul_u32_u24 v5, s{S_T2}, v4")
        e("v_lshrrev_b32 v5, 16, v5")
        e(f"v_mul_u32_u24 v6, {c.CPO}, v5")
        e("v_sub_u32 v6, v4, v6")
        e(f"v_mul_u32_u24 v7, {c.RS}, v5")
        e(f"v_lshl_add_u32 v7, v6, {4 if c.WK == 1 else 5}, v7")
        e(f"v_add_u32 v{VL+it}, s{S_T0}, v7")
        if shift:
            e(f"v_lshl_add_u32 v7, v6, 3, s{S_COL0}")
            e("v_mul_u32_u24 v7, 410, v7")
            e("v_lshrrev_b32 v7, 16, v7")
            e("v_lshlrev_b32 v7, 2, v7")
            e(f"v_bfe_u32 v7, s{S_K2}, v7, 4")
            e("v_add_u32 v5, v5, v7")
        e("v_lshlrev_b32 v6, 4, v6")
        e(f"v_mad_u32_u24 v7, v5, s{S_T3}, v6")
        e(f"v_add_u32 v{VGO+it}, s{S_T1}, v7")
        if 64 * (it + 1) > c.NCH:
            e(f"v_cmp_gt_u32 vcc, {c.NCH - 64*it}, v1")
            e("v_bfrev_b32 v7, 1")
            e("s_nop 0")
            e(f"v_cndmask_b32 v{VGO+it}, v7, v{VGO+it}, vcc")


def prefetch2d(e, ptr, nbytes, s_base, nrows, ld, width, s_w, nw):
    srd(e, SRD_P, ptr, 0, nbytes)
    nl = (width + 127) // 128 + (1 if (ld % 128 or width % 128) else 0)
    sh = max(0, (nl - 1).bit_length())
    per = 1 << sh
    ni = -(-(nrows * per) // (64 * nw))
    e(f"v_lshl_add_u32 v4, s{s_w}, 6, v1")
    e(f"s_mov_b32 s{S_T3}, {ld}")
    for i in range(ni):
        if i:
            e(f"v_add_u32 v4, {64*nw}, v4")
        e(f"v_lshrrev_b32 v5, {sh}, v4")
        e(f"v_min_u32 v5, {nrows-1}, v5")
        e(f"v_and_b32 v7, {per-1}, v4")
        e("v_lshlrev_b32 v7, 7, v7")
        e(f"v_min_u32 v7, {width-4}, v7")
        e(f"v_mad_u32_u24 v5, v5, s{S_T3}, v7")
        e(f"buffer_load_dword v15, v5, {SRD(SRD_P)}, {s_base} offen")
    return ni


def next_prefetch(stage):
    def pf(e, s_w, nw):
        if 'nopf' in OPT: return 0
        n = 0
        if stage == 1:
            e(f"s_mul_i32 s{S_T0}, s{S_SLOT}, {20*1280}")
            n += prefetch2d(e, P_W2, 640 * 1280, f"s{S_T0}", 20, 1280, 1280, s_w, nw)
        elif stage == 2:
            e(f"s_and_b32 s{S_T1}, s{S_XCD}, 1")
            e(f"s_mul_i32 s{S_T0}, s{S_SLOT}, {20*3456}")
            e(f"s_mul_i32 s{S_T2}, s{S_T1}, 1728")
            e(f"s_add_u32 s{S_T0}, s{S_T0}, s{S_T2}")
            n += prefetch2d(e, P_W3, 640 * 3456, f"s{S_T0}", 20, 3456, 1728, s_w, nw)
            e(f"s_mul_i32 s{S_T0}, s{S_SLOT}, {20*1280}")
            e(f"s_mul_i32 s{S_T2}, s{S_T1}, 640")
            e(f"s_add_u32 s{S_T0}, s{S_T0}, s{S_T2}")
            n += prefetch2d(e, P_WO, 640 * 1280, f"s{S_T0}", 20, 1280, 640, s_w, nw)
        elif stage == 3:
            e(f"s_and_b32 s{S_T1}, s{S_XCD}, 1")
            e(f"s_mul_i32 s{S_T0}, s{S_SLOT}, {54*1280}")
            e(f"s_mul_i32 s{S_T2}, s{S_T1}, 640")
            e(f"s_add_u32 s{S_T0}, s{S_T0}, s{S_T2}")
            n += prefetch2d(e, P_W4, F * 1280, f"s{S_T0}", 54, 1280, 640, s_w, nw)
        return n
    return pf


def loader(e, c, srds, shift=False, extra=None, tail=None, pf=None, deps=None):
    n = c.nAw + c.nBw
    VA, VB = 8, 16
    e.c("---- loader ----")
    e("v_and_b32 v1, 63, v0")
    e(f"s_sub_u32 s{S_WL}, s{S_WAVE}, 4")
    e("v_lshrrev_b32 v2, 3, v1")
    e("v_and_b32 v3, 7, v1")
    e(f"s_mul_i32 s{S_T1}, s{S_WL}, {c.nAw*8}")
    e(f"s_mov_b32 s{S_T2}, {c.lda}")
    for i in range(c.nAw):
        e(f"v_add3_u32 v4, v2, s{S_T1}, {8*i}")
        e("v_bfe_u32 v5, v4, 1, 3")
        e("v_xor_b32 v5, v5, v3")
        e("v_lshlrev_b32 v5, 4, v5")
        e(f"v_add_u32 v4, s{S_ROW0}, v4")
        e(f"v_mad_u32_u24 v{VA+i}, v4, s{S_T2}, v5")
    M = -(-65536 // c.CPR)
    e(f"s_mul_i32 s{S_T1}, s{S_WL}, {c.nBw*64}")
    e(f"s_lshl_b32 s{S_T3}, s{S_COL0}, 1")
    e(f"s_mov_b32 s{S_T2}, {M}")
    e(f"s_mov_b32 s{S_T0}, {c.ldb}")
    e("v_bfrev_b32 v7, 1")
    for i in range(c.nBw):
        e(f"v_add_u32 v4, s{S_T1}, v1")
        if i:
            e(f"v_add_u32 v4, {64*i}, v4")
        e(f"v_mul_u32_u24 v5, s{S_T2}, v4")
        e("v_lshrrev_b32 v5, 16, v5")
        e(f"v_mul_u32_u24 v6, {c.CPR}, v5")
        e("v_sub_u32 v4, v4, v6")
        for sb, db in c.swz:
            e(f"v_bfe_u32 v6, v5, {sb}, 1")
            e(f"v_lshlrev_b32 v6, {db+1}, v6")
            e("v_xor_b32 v4, v4, v6")
        if c.NT * 2 < c.CPR:
            e(f"v_cmp_gt_u32 vcc, {c.NT*2}, v4")
        e("v_lshlrev_b32 v4, 4, v4")
        e(f"v_add_u32 v4, s{S_T3}, v4")
        e(f"v_mad_u32_u24 v{VB+i}, v5, s{S_T0}, v4")
        if c.NT * 2 < c.CPR:
            e(f"v_cndmask_b32 v{VB+i}, v7, v{VB+i}, vcc")
    e(f"s_mul_i32 s{S_MA}, s{S_WL}, {c.nAw*1024}")
    e(f"s_mul_i32 s{S_MB}, s{S_WL}, {c.nBw*1024}")
    e(f"s_add_u32 s{S_MB}, s{S_MB}, {c.ABYTES}")
    e(f"s_mov_b32 s{S_KA}, 0")
    e(f"s_mov_b32 s{S_KB}, 0")
    e("s_waitcnt lgkmcnt(0)")
    srds(e)
    if deps:
        wait_deps(e, deps)
    asc = SC if deps else ""

    def issue():
        for i in range(c.nAw):
            e(f"s_add_u32 m0, s{S_MA}, {1024*i}")
            e("s_nop 0")
            if 'noload' not in OPT and 'noloadA' not in OPT:
                e(f"buffer_load_dwordx4 v{VA+i}, {SRD(SRD_A)}, s{S_KA} offen{asc} lds")
        for i in range(c.nBw):
            e(f"s_add_u32 m0, s{S_MB}, {1024*i}")
            e("s_nop 0")
            if 'noload' not in OPT and 'noloadB' not in OPT:
                e(f"buffer_load_dwordx4 v{VB+i}, {SRD(SRD_B)}, s{S_KB} offen lds")
        e(f"s_add_u32 s{S_KA}, s{S_KA}, 128")
        e(f"s_add_u32 s{S_KB}, s{S_KB}, {64*c.ldb}")
        e(f"s_add_u32 s{S_MA}, s{S_MA}, {c.BUFSZ}")
        e(f"s_add_u32 s{S_MB}, s{S_MB}, {c.BUFSZ}")
        e(f"s_cmp_ge_u32 s{S_MA}, {c.NBUF*c.BUFSZ}")
        e(f"s_cselect_b32 s{S_BUF}, {c.NBUF*c.BUFSZ}, 0")
        e(f"s_sub_u32 s{S_MA}, s{S_MA}, s{S_BUF}")
        e(f"s_sub_u32 s{S_MB}, s{S_MB}, s{S_BUF}")

    P = c.NBUF - 1
    nmain = c.NS - P
    np_loop = P
    if extra:
        issue()
        store_addrs(e, c, shift)
        extra(e)
        np_loop = P - 1
    lp = e.new("Lldp")
    e(f"s_mov_b32 s{S_CNT}, {np_loop}")
    e.label(lp)
    issue()
    e(f"s_sub_u32 s{S_CNT}, s{S_CNT}, 1")
    e(f"s_cmp_lg_u32 s{S_CNT}, 0")
    e(f"s_cbranch_scc1 {lp}")
    if not extra:
        store_addrs(e, c, shift)
    lm = e.new("Lldm")
    e(f"s_mov_b32 s{S_CNT}, {nmain}")
    e.label(lm)
    e(f"s_waitcnt vmcnt({n*(P-1)})")
    e("s_barrier")
    issue()
    e(f"s_sub_u32 s{S_CNT}, s{S_CNT}, 1")
    e(f"s_cmp_lg_u32 s{S_CNT}, 0")
    e(f"s_cbranch_scc1 {lm}")
    npf = pf(e, S_WL, 4) if pf else 0
    for j in range(P):
        assert n * (P - 1 - j) + npf <= 63
        e(f"s_waitcnt vmcnt({n*(P-1-j) + npf})")
        e("s_barrier")
    if 'noepi' in OPT:
        e("s_endpgm")
    tail(e)


class Regs:
    def __init__(self, c, nextra):
        self.ACC = 16
        p = self.ACC + c.mt * c.nt * 4
        self.R = []
        for s in range(2):
            X = p; p += c.mt * 4
            W = p; p += c.nt * 4
            self.R.append((X, W))
        self.EX = p; p += nextra * 4
        self.ONES = p; p += 4
        self.END = p
        assert p <= VX1
        self.c = c

    def acc(self, i, t):
        return self.ACC + (i * self.c.nt + t) * 4


VA0, VA1 = 8, 9
VJ, VG = 2, 3
VSTG = 12
VK0 = 13


def wmwn(e, c):
    if c.WN == 2 or c.WK == 2:
        e(f"s_lshr_b32 s{S_T0}, s{S_WAVE}, 1")
        e(f"s_and_b32 s{S_T1}, s{S_WAVE}, 1")
    else:
        e(f"s_mov_b32 s{S_T0}, s{S_WAVE}")
        e(f"s_mov_b32 s{S_T1}, 0")


def consumer(e, c, R, srds, extras=None, pre=None, shift=False, deps=False):
    e.c("---- consumer ----")
    e("v_and_b32 v1, 63, v0")
    e(f"v_and_b32 v{VJ}, 15, v1")
    e(f"v_lshrrev_b32 v{VG}, 4, v1")
    wmwn(e, c)
    e(f"v_bfe_u32 v4, v{VJ}, 1, 3")
    e(f"v_xor_b32 v4, v4, v{VG}")
    e("v_lshlrev_b32 v4, 4, v4")
    e(f"v_lshl_add_u32 v4, v{VJ}, 7, v4")
    e(f"s_mul_i32 s{S_T2}, s{S_T0}, {c.mt*2048}")
    e(f"v_add_u32 v{VA0}, s{S_T2}, v4")
    if c.WK == 2:
        e(f"s_lshl_b32 s{S_T2}, s{S_T1}, 6")
        e(f"v_xor_b32 v{VA0}, s{S_T2}, v{VA0}")
    else:
        e(f"v_xor_b32 v{VA1}, 64, v{VA0}")
    e(f"v_lshrrev_b32 v4, 2, v{VJ}")
    e(f"v_lshl_add_u32 v4, v{VG}, 3, v4")
    e("v_mov_b32 v6, 0")
    for sb, db in c.swz:
        e(f"v_bfe_u32 v5, v4, {sb}, 1")
        e(f"v_lshl_or_b32 v6, v5, {db}, v6")
    e(f"v_mul_u32_u24 v4, {c.SB}, v4")
    e(f"v_and_b32 v5, 3, v{VJ}")
    e("v_lshl_add_u32 v4, v5, 3, v4")
    if c.WK == 2:
        e(f"s_mul_i32 s{S_T2}, s{S_T1}, {32*c.SB}")
        e(f"s_add_u32 s{S_T2}, s{S_T2}, {c.ABYTES}")
        e(f"v_add_u32 v4, s{S_T2}, v4")
        e(f"s_mov_b32 s{S_T3}, 0")
    else:
        e(f"v_add_u32 v4, {c.ABYTES}, v4")
        e(f"s_mul_i32 s{S_T3}, s{S_T1}, {c.nt}")
    for t in range(c.nt):
        e(f"s_add_u32 s{S_T2}, s{S_T3}, {t}")
        e(f"v_xor_b32 v5, s{S_T2}, v6")
        e(f"v_lshl_add_u32 v{VBT+t}, v5, 5, v4")
    if c.WK == 1:
        e(f"s_mul_i32 s{S_T2}, s{S_T0}, {c.mt*16*c.RS}")
        e(f"s_mul_i32 s{S_T3}, s{S_T1}, {c.nt*32}")
    else:
        e(f"s_mul_i32 s{S_T2}, s{S_T0}, {c.mt*16*c.RS}")
        e(f"s_mul_i32 s{S_T3}, s{S_T1}, {c.Tm*c.RS}")
    e(f"s_add_u32 s{S_T2}, s{S_T2}, s{S_T3}")
    e(f"s_add_u32 s{S_T2}, s{S_T2}, {c.STG}")
    e(f"v_mul_u32_u24 v4, {c.RS}, v{VJ}")
    e(f"v_lshl_add_u32 v4, v{VG}, {3 if c.WK == 1 else 4}, v4")
    e(f"v_add_u32 v{VSTG}, s{S_T2}, v4")
    store_addrs(e, c, shift)
    e("s_waitcnt lgkmcnt(0)")
    srds(e)
    for r in range(R.ACC, R.ACC + c.mt * c.nt * 4):
        e(f"v_mov_b32 v{r}, 0")
    if extras:
        for r in range(R.EX, R.EX + extras[1]):
            e(f"v_mov_b32 v{r}, 0")
        for r in range(R.ONES, R.ONES + 4):
            e(f"v_mov_b32 v{r}, 0x3f803f80")
    if deps and PERSIST:
        e("s_barrier")
    if pre:
        pre(e)
    extras = extras[0] if extras else None

    def reads(s, ks):
        X, W = R.R[s]
        out = []
        va = VA0 if ks == 0 else VA1
        for i in range(c.mt):
            out.append(f"ds_read_b128 {vr(X+4*i,4)}, v{va} offset:{i*2048}")
        for t in range(c.nt):
            for h in range(2):
                out.append(f"ds_read_b64_tr_b16 {vr(W+4*t+2*h,2)}, v{VBT+t} offset:{(32*ks+4*h)*c.SB}")
        return out

    def mfmas(s):
        X, W = R.R[s]
        out = []
        for t in range(c.nt):
            for i in range(c.mt):
                a = R.acc(i, t)
                out.append(f"v_mfma_f32_16x16x32_bf16 {vr(a,4)}, {vr(W+4*t,4)}, {vr(X+4*i,4)}, {vr(a,4)}")
        return out

    def interleave(ms, rs):
        if 'nomfma' in OPT: ms = []
        if 'noread' in OPT: rs = []
        k = 0
        per = -(-len(rs) // max(1, len(ms) - 2)) if rs else 0
        for m in ms:
            e(m)
            for _ in range(per):
                if k < len(rs):
                    e(rs[k]); k += 1
        while k < len(rs):
            e(rs[k]); k += 1

    def advance():
        e(f"s_add_u32 s{S_BUF}, s{S_BUF}, {c.BUFSZ}")
        e(f"s_cmp_ge_u32 s{S_BUF}, {c.NBUF*c.BUFSZ}")
        e(f"s_cselect_b32 s{S_T2}, {c.NBUF*c.BUFSZ}, 0")
        e(f"s_sub_u32 s{S_BUF}, s{S_BUF}, s{S_T2}")
        e(f"s_sub_u32 s{S_T2}, {c.BUFSZ}, s{S_T2}")
        for v in ([VA0, VA1] if c.WK == 1 else [VA0]) + [VBT + t for t in range(c.nt)]:
            e(f"v_add_u32 v{v}, s{S_T2}, v{v}")

    e(f"s_mov_b32 s{S_BUF}, 0")
    stamp(e, 1)
    e("s_barrier")
    stamp(e, 2)
    for r in reads(0, 0):
        e(r)
    lp = e.new("Lc")
    if c.WK == 1:
        def body(last):
            e("s_waitcnt lgkmcnt(0)")
            interleave(mfmas(0), reads(1, 1))
            if extras and 'nomfma' not in OPT and 'noextra' not in OPT:
                extras(e, 0)
            if not last:
                advance()
            e("s_waitcnt lgkmcnt(0)")
            if not last:
                e("s_barrier")
                interleave(mfmas(1), reads(0, 0))
            else:
                interleave(mfmas(1), [])
            if extras and 'nomfma' not in OPT and 'noextra' not in OPT:
                extras(e, 1)

        e(f"s_mov_b32 s{S_CNT}, {c.NS-1}")
        e.label(lp)
        body(False)
        e(f"s_sub_u32 s{S_CNT}, s{S_CNT}, 1")
        e(f"s_cmp_lg_u32 s{S_CNT}, 0")
        e(f"s_cbranch_scc1 {lp}")
        body(True)
    else:
        assert c.NS % 2 == 1
        e(f"s_mov_b32 s{S_CNT}, {c.NS//2}")
        e.label(lp)
        for s in range(2):
            advance()
            e("s_waitcnt lgkmcnt(0)")
            e("s_barrier")
            interleave(mfmas(s), reads(1 - s, 0))
        e(f"s_sub_u32 s{S_CNT}, s{S_CNT}, 1")
        e(f"s_cmp_lg_u32 s{S_CNT}, 0")
        e(f"s_cbranch_scc1 {lp}")
        e("s_waitcnt lgkmcnt(0)")
        interleave(mfmas(0), [])
    e.nop(10)
    stamp(e, 3)
    if 'noepi' in OPT:
        e("s_endpgm")


def per_wave_blocks(e, blocks):
    done = e.new("Lxd")
    for w, b in enumerate(blocks):
        nxt = e.new("Lx")
        if w < len(blocks) - 1:
            e(f"s_cmp_lg_u32 s{S_WAVE}, {w}")
            e(f"s_cbranch_scc1 {nxt}")
        for s in b:
            e(s)
        if w < len(blocks) - 1:
            e(f"s_branch {done}")
            e.label(nxt)
    e.label(done)


def bf16r(e, d, s):
    e(f"v_cvt_pk_bf16_f32 v{d}, v{s}, v{s}")
    e(f"v_lshlrev_b32 v{d}, 16, v{d}")


def unpack2(e, d, s):
    e(f"v_lshlrev_b32 v{d}, 16, v{s}")
    e(f"v_and_b32 v{d+1}, 0xffff0000, v{s}")


def stage_write(e, c, i, t, p):
    e(f"ds_write_b64 v{VSTG}, {vr(p,2)} offset:{i*16*c.RS + t*32}")


def part1_plain(e, c, R):
    T = R.R[0][0]
    k = 0
    for i in range(c.mt):
        for t in range(c.nt):
            a = R.acc(i, t)
            p = T + 2 * (k % 8); k += 1
            e(f"v_cvt_pk_bf16_f32 v{p}, v{a}, v{a+1}")
            e(f"v_cvt_pk_bf16_f32 v{p+1}, v{a+2}, v{a+3}")
            stage_write(e, c, i, t, p)


def part1_ln(e, c, R, MB, RSQ, CSR):
    T = R.R[0][0]
    k = 0
    for i in range(c.mt):
        for t in range(c.nt):
            a = R.acc(i, t)
            p = T + 2 * (k % 8); k += 1
            for r in range(4):
                e(f"v_fma_f32 v{a+r}, -v{MB+i}, v{CSR+4*t+r}, v{a+r}")
            for r in range(4):
                e(f"v_mul_f32 v{a+r}, v{a+r}, v{RSQ+i}")
            e(f"v_cvt_pk_bf16_f32 v{p}, v{a}, v{a+1}")
            e(f"v_cvt_pk_bf16_f32 v{p+1}, v{a+2}, v{a+3}")
            stage_write(e, c, i, t, p)


GELU_C0 = 2.0 * 0.7978845608028654 * 1.4426950408889634
GELU_C1 = GELU_C0 * 0.044715


def part2_store(e, c, gelu=False):
    stamp(e, 4)
    DB = 16
    for it in range(c.NI):
        e(f"ds_read_b128 {vr(DB+4*it,4)}, v{VL+it}")
    if gelu:
        e(f"v_mov_b32 v{VK0}, {hex(f32bits(-GELU_C0))}")
        e(f"s_mov_b32 s{S_K1}, {hex(f32bits(-GELU_C1))}")
    for it in range(c.NI):
        e(f"s_waitcnt lgkmcnt({c.NI-1-it})")
        d = DB + 4 * it
        if gelu:
            X, Y = 40, 48
            for q in range(4):
                unpack2(e, X + 2 * q, d + q)
            for r in range(8):
                e(f"v_mul_f32 v{Y+r}, v{X+r}, v{X+r}")
            for r in range(8):
                e(f"v_fma_f32 v{Y+r}, v{Y+r}, s{S_K1}, v{VK0}")
            for r in range(8):
                e(f"v_mul_f32 v{Y+r}, v{Y+r}, v{X+r}")
            for r in range(8):
                e(f"v_exp_f32 v{Y+r}, v{Y+r}")
            for r in range(8):
                e(f"v_add_f32 v{Y+r}, 1.0, v{Y+r}")
            for r in range(8):
                e(f"v_rcp_f32 v{Y+r}, v{Y+r}")
            for r in range(8):
                e(f"v_mul_f32 v{X+r}, v{X+r}, v{Y+r}")
            for q in range(4):
                e(f"v_cvt_pk_bf16_f32 v{d+q}, v{X+2*q}, v{X+2*q+1}")
        e(f"buffer_store_dwordx4 {vr(d,4)}, v{VGO+it}, {SRD(SRD_C)}, 0 offen{SC}")
    stamp_flush(e, 5)


def ln_from_sums(e, vsum, vsq, vmb, vrs, t):
    e(f"v_mul_f32 v{vsum}, {hex(f32bits(1.0/640))}, v{vsum}")
    e(f"v_mul_f32 v{vsq}, {hex(f32bits(1.0/640))}, v{vsq}")
    e(f"v_fma_f32 v{vsq}, -v{vsum}, v{vsum}, v{vsq}")
    e(f"v_max_f32 v{vsq}, 0, v{vsq}")
    bf16r(e, vmb, vsum)
    bf16r(e, t, vsq)
    e(f"v_add_f32 v{t}, {hex(f32bits(1e-5))}, v{t}")
    bf16r(e, t, t)
    e(f"v_sqrt_f32 v{t}, v{t}")
    e("s_nop 0")
    bf16r(e, t, t)
    e(f"v_rcp_f32 v{vrs}, v{t}")
    e("s_nop 0")


END_LABEL = [None]


def kernel_head(e, name, nwg, phase):
    PHASE[0] = phase - 1
    if PERSIST and phase > 1:
        publish(e, f"Lphase{phase}", phase == 2)
        stamp(e, 0)
        return END_LABEL[0]
    if PERSIST:
        name = NAME + "_kernel"
    e.L.append(f".globl {name}")
    e.L.append(".p2align 8")
    e.L.append(f".type {name},@function")
    e.label(name)
    end = e.new("Lend")
    END_LABEL[0] = end
    e(f"s_cmp_ge_u32 s2, {nwg}")
    e(f"s_cbranch_scc1 {end}")
    stamp(e, 0)
    e("s_load_dwordx16 s[16:31], s[0:1], 0")
    e("s_load_dwordx8 s[32:39], s[0:1], 64")
    e("v_lshrrev_b32 v1, 6, v0")
    e(f"s_and_b32 s{S_XCD}, s2, 7")
    e(f"v_readfirstlane_b32 s{S_WAVE}, v1")
    e(f"s_lshr_b32 s{S_SLOT}, s2, 3")
    if PERSIST:
        l = e.new("Ltg")
        e("s_cmp_lg_u32 s2, 0")
        e(f"s_cbranch_scc1 {l}")
        e(f"s_cmp_lg_u32 s{S_WAVE}, 3")
        e(f"s_cbranch_scc1 {l}")
        e("s_memrealtime s[4:5]")
        e("s_waitcnt lgkmcnt(0)")
        srd(e, SRD_P, P_DBG, 0, 256)
        e("s_or_b32 s4, s4, 1")
        e("v_mov_b32 v4, 0")
        e("v_mov_b32 v6, s4")
        e("v_mov_b32 v7, s5")
        e("s_mov_b64 exec, 1")
        e(f"buffer_store_dwordx2 v[6:7], v4, {SRD(SRD_P)}, 0 offen sc1")
        e("s_mov_b64 exec, -1")
        e.label(l)
    return end


def kernel_tail(e, end, last):
    if PERSIST and not last:
        return
    e.label(end)
    e("s_endpgm")


def kd(name, vgpr):
    acc = (vgpr + 3) // 4 * 4
    return f""".p2align 6
.amdhsa_kernel {name}
  .amdhsa_next_free_vgpr {vgpr}
  .amdhsa_next_free_sgpr 102
  .amdhsa_accum_offset {acc}
  .amdhsa_group_segment_fixed_size 0
  .amdhsa_kernarg_size 96
  .amdhsa_user_sgpr_count 2
  .amdhsa_user_sgpr_kernarg_segment_ptr 1
  .amdhsa_system_sgpr_workgroup_id_x 1
.end_amdhsa_kernel
"""


def xreduce(e, regs, t0, t1):
    for op in ("v_permlane32_swap_b32", "v_permlane16_swap_b32"):
        for r in regs:
            e(f"v_mov_b32 v{t0}, v{r}")
            e(f"v_mov_b32 v{t1}, v{r}")
            e("s_nop 1")
            e(f"{op} v{t0}, v{t1}")
            e("s_nop 0")
            e(f"v_add_f32 v{r}, v{t0}, v{t1}")


def colsum_exchange(e, c, R, CS, nslots, CSR):
    SCRB = c.SCR
    e(f"v_cmp_eq_u32 s[{S_M0}:{S_M0+1}], 0, v{VJ}")
    e(f"s_lshl_b32 s{S_T2}, s{S_WAVE}, 6")
    e(f"s_add_u32 s{S_T2}, s{S_T2}, {SCRB}")
    e(f"v_lshl_add_u32 v6, v{VG}, 4, s{S_T2}")
    e(f"s_mov_b64 exec, s[{S_M0}:{S_M0+1}]")
    for u in range(nslots):
        e(f"ds_write_b128 v6, {vr(CS+4*u,4)} offset:{u*256}")
    e("s_mov_b64 exec, -1")
    e("s_waitcnt vmcnt(0) lgkmcnt(0)")
    e("s_barrier")
    e(f"v_lshlrev_b32 v7, 4, v{VG}")
    e(f"v_add_u32 v7, {SCRB}, v7")
    for t in range(c.nt):
        e(f"ds_read_b128 {vr(CSR+4*t,4)}, v7 offset:{t*64}")


def stage1(e):
    name = "k1_kernel"
    end = kernel_head(e, name, 256, 1)
    NX = "Lphase2"
    cq = Cfg(128, 192, 640, 384, 4, 2, 2, 1280, 3840, 3840)
    c = Cfg(128, 112, 640, 256, 5, 4, 1, 1280, 1280, 1280)
    pf = next_prefetch(1)
    e(f"s_lshr_b32 s5, s{S_XCD}, 2")
    e(f"s_and_b32 s3, s{S_XCD}, 3")
    e(f"s_and_b32 s6, s{S_SLOT}, 7")
    e("s_lshl_b32 s5, s5, 3")
    e(f"s_add_u32 s{S_RB}, s5, s6")
    e(f"s_lshr_b32 s4, s{S_SLOT}, 3")
    e("s_lshl_b32 s4, s4, 2")
    e(f"s_add_u32 s{S_CT}, s4, s3")
    e(f"s_lshl_b32 s{S_ROW0}, s{S_RB}, 7")
    e(f"s_lshl_b32 s{S_FIDX}, s{S_RB}, 4")
    e(f"s_add_u32 s{S_FIDX}, s{S_FIDX}, s{S_CT}")
    lw1 = e.new("Lw1")
    e(f"s_cmp_ge_u32 s{S_CT}, 10")
    e(f"s_cbranch_scc1 {lw1}")

    def srds_q(e):
        srd(e, SRD_A, P_X, 0, S * 1280)
        srd(e, SRD_B, P_WQKV, 0, 640 * 3840)
        srd(e, SRD_C, P_WS, WS_QKV, S * 3840)

    e(f"s_mul_i32 s{S_COL0}, s{S_CT}, 192")
    lldq = e.new("Lld")
    e(f"s_cmp_ge_u32 s{S_WAVE}, 4")
    e(f"s_cbranch_scc1 {lldq}")
    R = Regs(cq, 0)
    consumer(e, cq, R, srds_q)
    part1_plain(e, cq, R)
    e("s_waitcnt lgkmcnt(0)")
    lp2 = e.new("Lp2")
    e.label(lp2)
    e("s_barrier")
    part2_store(e, cq)
    phase_end(e, NX)
    e.label(lldq)
    loader(e, cq, srds_q, tail=lambda e: e(f"s_branch {lp2}"), pf=pf)

    e.label(lw1)

    def srds_1(e):
        srd(e, SRD_A, P_X, 0, S * 1280)
        srd(e, SRD_B, P_W1, 0, 640 * 1280)
        srd(e, SRD_C, P_WS, WS_HS - 2 * 1280, (S + 4) * 1280)

    e(f"s_sub_u32 s{S_CT}, s{S_CT}, 10")
    e(f"s_mul_i32 s{S_COL0}, s{S_CT}, 112")
    e(f"s_mul_i32 s{S_T0}, s{S_CT}, 96")
    e(f"s_add_u32 s{S_T0}, s{S_T0}, 48")
    e(f"s_min_u32 s{S_COL0}, s{S_COL0}, s{S_T0}")
    lld1 = e.new("Lld")
    e(f"s_cmp_ge_u32 s{S_WAVE}, 4")
    e(f"s_cbranch_scc1 {lld1}")
    R = Regs(c, 6)
    SUM, SQ, CS = R.EX, R.EX + 8, R.EX + 16

    def extras(e, s):
        X, W = R.R[s]
        for a in range(2):
            x = X + 4 * a
            e(f"v_mfma_f32_16x16x32_bf16 {vr(SUM+4*a,4)}, {vr(R.ONES,4)}, {vr(x,4)}, {vr(SUM+4*a,4)}")
            e(f"v_mfma_f32_16x16x32_bf16 {vr(SQ+4*a,4)}, {vr(x,4)}, {vr(x,4)}, {vr(SQ+4*a,4)}")
        blocks = []
        for w in range(4):
            b = []
            for u in range(2):
                t = w + 4 * u
                if t < 7:
                    b.append(f"v_mfma_f32_16x16x32_bf16 {vr(CS+4*u,4)}, {vr(W+4*t,4)}, {vr(R.ONES,4)}, {vr(CS+4*u,4)}")
            blocks.append(b)
        per_wave_blocks(e, blocks)

    consumer(e, c, R, srds_1, (extras, 24), shift=True)
    T = R.R[0][0]
    CSR = R.R[1][0]
    colsum_exchange(e, c, R, CS, 2, CSR)
    e(f"v_and_b32 v4, 3, v{VJ}")
    e(f"v_cmp_eq_u32 s[{S_M1}:{S_M1+1}], 1, v4")
    e(f"v_cmp_eq_u32 s[{S_M2}:{S_M2+1}], 2, v4")
    e(f"v_cmp_eq_u32 s[{S_M3}:{S_M3+1}], 3, v4")
    e(f"v_lshrrev_b32 v5, 2, v{VJ}")
    e(f"v_cmp_eq_u32 s[{S_M0}:{S_M0+1}], v5, v{VG}")
    for a in range(2):
        q = SQ + 4 * a
        e(f"v_cndmask_b32 v{q}, v{q}, v{q+1}, s[{S_M1}:{S_M1+1}]")
        e(f"v_cndmask_b32 v{q}, v{q}, v{q+2}, s[{S_M2}:{S_M2+1}]")
        e(f"v_cndmask_b32 v{q}, v{q}, v{q+3}, s[{S_M3}:{S_M3+1}]")
        e(f"v_cndmask_b32 v{q}, 0, v{q}, s[{S_M0}:{S_M0+1}]")
    xreduce(e, [SQ, SQ + 4], T, T + 1)
    MB = CS
    for i in range(2):
        ln_from_sums(e, SUM + 4 * i, SQ + 4 * i, MB + i, MB + 2 + i, 4)
    e("s_waitcnt lgkmcnt(0)")
    part1_ln(e, c, R, MB, MB + 2, CSR)
    e("s_waitcnt lgkmcnt(0)")
    lp2 = e.new("Lp2")
    e.label(lp2)
    e("s_barrier")
    part2_store(e, c, gelu=True)
    lz = e.new("Lz")
    e(f"s_cmp_lg_u32 s{S_WAVE}, 0")
    e(f"s_cbranch_scc1 {lz}")
    e(f"s_cmp_lg_u32 s{S_CT}, 0")
    e(f"s_cbranch_scc1 {lz}")
    e("v_lshlrev_b32 v4, 3, v1")
    e("v_mov_b32 v6, 0")
    e("v_mov_b32 v7, 0")
    e("v_cmp_gt_u32 vcc, 40, v1")
    e("s_nop 1")
    e("s_mov_b64 exec, vcc")
    lz2 = e.new("Lz")
    e(f"s_cmp_lg_u32 s{S_RB}, 0")
    e(f"s_cbranch_scc1 {lz2}")
    for row, col in ((0, 0), (0, 320), (1, 320)):
        e(f"s_mov_b32 s{S_T3}, {(row+2)*1280 + col*2}")
        e(f"buffer_store_dwordx2 v[6:7], v4, {SRD(SRD_C)}, s{S_T3} offen{SC}")
    e.label(lz2)
    e(f"s_cmp_lg_u32 s{S_RB}, 15")
    e(f"s_cbranch_scc1 {lz}")
    for row, col in ((2047, 160), (2046, 480), (2047, 480)):
        e(f"s_mov_b32 s{S_T3}, {(row+2)*1280 + col*2}")
        e(f"buffer_store_dwordx2 v[6:7], v4, {SRD(SRD_C)}, s{S_T3} offen{SC}")
    e.label(lz)
    e("s_mov_b64 exec, -1")
    phase_end(e, NX)
    e.label(lld1)
    loader(e, c, srds_1, shift=True, tail=lambda e: (e("s_barrier"), e(f"s_branch {lp2}")), pf=pf)
    kernel_tail(e, end, False)
    return name, NVGPR, 163840


def stage2(e):
    name = "k2_kernel"
    end = kernel_head(e, name, 256, 2)
    NX = "Lphase3"
    c = Cfg(128, 80, 640, 192, 5, 4, 1, 1280, 1280, 1280)
    pf = next_prefetch(2)
    latt = e.new("Latt")
    e(f"s_cmp_ge_u32 s{S_SLOT}, 16")
    e(f"s_cbranch_scc1 {latt}")
    e(f"s_lshl_b32 s5, s{S_XCD}, 1")
    e(f"s_lshr_b32 s6, s{S_SLOT}, 3")
    e(f"s_add_u32 s{S_RB}, s5, s6")
    e(f"s_and_b32 s{S_CT}, s{S_SLOT}, 7")
    e(f"s_lshl_b32 s{S_ROW0}, s{S_RB}, 7")
    e(f"s_mul_i32 s{S_COL0}, s{S_CT}, 80")
    e(f"s_lshl_b32 s{S_FIDX}, s{S_RB}, 4")
    e(f"s_add_u32 s{S_FIDX}, s{S_FIDX}, s{S_CT}")
    e(f"s_add_u32 s{S_FIDX}, s{S_FIDX}, 256")

    def deps_g(e):
        e("v_lshrrev_b32 v4, 3, v1")
        e("v_min_u32 v4, 2, v4")
        e(f"s_sub_u32 s{S_T0}, s{S_RB}, 1")
        e(f"v_add_u32 v4, s{S_T0}, v4")
        e("v_max_i32 v4, 0, v4")
        e("v_min_i32 v4, 15, v4")
        e("v_and_b32 v5, 7, v1")
        e("v_min_u32 v5, 5, v5")
        e("v_lshl_add_u32 v4, v4, 4, v5")
        e("v_add_u32 v4, 10, v4")

    def srds(e):
        srd(e, SRD_A, P_WS, WS_HS, S * 1280)
        srd(e, SRD_B, P_W2, 0, 640 * 1280)
        srd(e, SRD_C, P_WS, WS_X1, S * 1280)
        srd(e, SRD_D, P_X, 0, S * 1280)
        srd(e, SRD_F, P_WS, WS_PART, S * 128)

    lld = e.new("Lld")
    e(f"s_cmp_ge_u32 s{S_WAVE}, 4")
    e(f"s_cbranch_scc1 {lld}")
    R = Regs(c, 5)
    XR = R.EX

    def pre(e):
        e(f"s_lshl_b32 s{S_T2}, s{S_WAVE}, 5")
        e(f"s_add_u32 s{S_T2}, s{S_T2}, s{S_ROW0}")
        e(f"s_lshl_b32 s{S_T3}, s{S_COL0}, 1")
        e(f"v_add_u32 v4, s{S_T2}, v{VJ}")
        e(f"v_lshl_add_u32 v5, v{VG}, 3, s{S_T3}")
        e(f"s_mov_b32 s{S_T2}, 1280")
        e(f"v_mad_u32_u24 v4, v4, s{S_T2}, v5")
        e(f"s_mov_b32 s{S_T2}, {16*1280}")
        for i in range(2):
            for t in range(5):
                so = f"s{S_T2}" if i else "0"
                e(f"buffer_load_dwordx2 {vr(XR+2*(i*5+t),2)}, v4, {SRD(SRD_D)}, {so} offen offset:{t*32}")

    consumer(e, c, R, srds, None, pre, deps=True)
    e("s_waitcnt vmcnt(0)")
    T = R.R[0][0]
    PS = R.R[1][0]
    for i in range(2):
        for r in range(4):
            e(f"v_mov_b32 v{PS+4*i+r}, 0")
    k = 0
    for i in range(2):
        for t in range(5):
            a = R.acc(i, t)
            x = XR + 2 * (i * 5 + t)
            pout = T + 16 + 2 * (k % 4); k += 1
            e(f"v_cvt_pk_bf16_f32 v{T+4}, v{a}, v{a+1}")
            e(f"v_cvt_pk_bf16_f32 v{T+5}, v{a+2}, v{a+3}")
            unpack2(e, T, T + 4)
            unpack2(e, T + 2, T + 5)
            unpack2(e, T + 4, x)
            unpack2(e, T + 6, x + 1)
            for r in range(4):
                e(f"v_add_f32 v{T+r}, v{T+r}, v{T+4+r}")
            e(f"v_cvt_pk_bf16_f32 v{pout}, v{T}, v{T+1}")
            e(f"v_cvt_pk_bf16_f32 v{pout+1}, v{T+2}, v{T+3}")
            stage_write(e, c, i, t, pout)
            unpack2(e, T, pout)
            unpack2(e, T + 2, pout + 1)
            for r in range(4):
                e(f"v_add_f32 v{PS+4*i}, v{PS+4*i}, v{T+r}")
                e(f"v_fmac_f32 v{PS+4*i+1}, v{T+r}, v{T+r}")
    xreduce(e, [PS, PS + 1, PS + 4, PS + 5], T, T + 1)
    e(f"s_lshl_b32 s{S_T2}, s{S_WAVE}, 5")
    e(f"s_add_u32 s{S_T2}, s{S_T2}, s{S_ROW0}")
    e(f"v_add_u32 v4, s{S_T2}, v{VJ}")
    e(f"s_lshl_b32 s{S_T3}, s{S_CT}, 4")
    e(f"v_lshl_add_u32 v4, v4, 7, s{S_T3}")
    e("s_mov_b64 exec, 0xffff")
    e(f"buffer_store_dwordx2 {vr(PS,2)}, v4, {SRD(SRD_F)}, 0 offen{SC}")
    e(f"buffer_store_dwordx2 {vr(PS+4,2)}, v4, {SRD(SRD_F)}, 0 offen offset:2048{SC}")
    e("s_mov_b64 exec, -1")
    e("s_waitcnt lgkmcnt(0)")
    lp2 = e.new("Lp2")
    e.label(lp2)
    e("s_barrier")
    part2_store(e, c)
    phase_end(e, NX)
    e.label(lld)
    loader(e, c, srds, tail=lambda e: e(f"s_branch {lp2}"), pf=pf, deps=deps_g)

    e.label(latt)
    e(f"s_sub_u32 s4, s{S_SLOT}, 16")
    e(f"s_lshl_b32 s5, s{S_XCD}, 4")
    e("s_add_u32 s5, s5, s4")
    e(f"s_lshl_b32 s{S_ROW0}, s5, 4")
    e("v_and_b32 v1, 63, v0")
    e(f"s_lshr_b32 s{S_RB}, s5, 3")
    e(f"s_lshl_b32 s{S_FIDX}, s{S_RB}, 4")
    e("s_and_b32 s6, s5, 7")
    e(f"s_add_u32 s{S_FIDX}, s{S_FIDX}, s6")
    e(f"s_add_u32 s{S_FIDX}, s{S_FIDX}, 264")

    def deps_a(e):
        e(f"s_sub_u32 s{S_T0}, s{S_ROW0}, 14")
        e(f"s_max_i32 s{S_T0}, s{S_T0}, 0")
        e(f"s_lshr_b32 s{S_T0}, s{S_T0}, 7")
        e(f"s_sub_u32 s{S_T1}, s{S_RB}, s{S_T0}")
        e("v_bfe_u32 v4, v1, 4, 1")
        e(f"v_mul_u32_u24 v4, s{S_T1}, v4")
        e(f"v_add_u32 v4, s{S_T0}, v4")
        e("v_and_b32 v5, 15, v1")
        e("v_min_u32 v5, 9, v5")
        e("v_lshl_add_u32 v4, v4, 4, v5")

    e("s_waitcnt lgkmcnt(0)")
    wait_deps(e, deps_a)
    e(f"s_sub_u32 s{S_T0}, s{S_ROW0}, 14")
    e(f"s_mul_i32 s{S_T0}, s{S_T0}, 3840")
    e(f"s_lshl_b32 s{S_T1}, s{S_WAVE}, 10")
    e(f"s_add_u32 s{S_T0}, s{S_T0}, s{S_T1}")
    e(f"v_lshl_add_u32 v2, v1, 4, s{S_T0}")
    e("v_bfrev_b32 v7, 1")
    e(f"s_mov_b32 s{S_MA}, s{S_T1}")
    e("s_waitcnt lgkmcnt(0)")
    srd(e, SRD_A, P_WS, WS_QKV, S * 3840)
    srd(e, SRD_C, P_WS, WS_O, S * 1280)
    srd(e, SRD_D, P_X, 0, S * 1280)
    srd(e, SRD_E, P_GW, 0, 1280)
    srd(e, SRD_F, P_WS, WS_G, S * 4)
    for i in range(15):
        e(f"v_cmp_gt_i32 vcc, 0, v2")
        e(f"s_mov_b32 m0, s{S_MA}")
        e("s_nop 0")
        e("v_cndmask_b32 v3, v2, v7, vcc")
        if i == 14:
            lsk = e.new("Lsk")
            e(f"s_cmp_lg_u32 s{S_WAVE}, 0")
            e(f"s_cbranch_scc1 {lsk}")
        e(f"buffer_load_dwordx4 v3, {SRD(SRD_A)}, 0 offen{SC} lds")
        if i == 14:
            e.label(lsk)
        else:
            e("v_add_u32 v2, 0x2000, v2")
            e(f"s_add_u32 s{S_MA}, s{S_MA}, 0x2000")
    e("v_lshrrev_b32 v4, 5, v0")
    e("v_and_b32 v14, 31, v0")
    e("v_mul_u32_u24 v6, 40, v14")
    e("v_mul_u32_u24 v8, 3840, v4")
    e("v_add_u32 v8, v8, v6")
    e(f"v_add_u32 v9, s{S_ROW0}, v4")
    e(f"s_mov_b32 s{S_T2}, 1280")
    e(f"v_mad_u32_u24 v13, v9, s{S_T2}, v6")
    GX, GWR = 150, 160
    e(f"buffer_load_dwordx4 {vr(GX,4)}, v13, {SRD(SRD_D)}, 0 offen")
    e(f"buffer_load_dwordx4 {vr(GX+4,4)}, v13, {SRD(SRD_D)}, 0 offen offset:16")
    e(f"buffer_load_dwordx2 {vr(GX+8,2)}, v13, {SRD(SRD_D)}, 0 offen offset:32")
    e(f"buffer_load_dwordx4 {vr(GWR,4)}, v6, {SRD(SRD_E)}, 0 offen")
    e(f"buffer_load_dwordx4 {vr(GWR+4,4)}, v6, {SRD(SRD_E)}, 0 offen offset:16")
    e(f"buffer_load_dwordx2 {vr(GWR+8,2)}, v6, {SRD(SRD_E)}, 0 offen offset:32")
    stamp(e, 1)
    e("s_waitcnt vmcnt(0)")
    e("s_barrier")
    pf(e, S_WAVE, 8)
    stamp(e, 2)
    stamp(e, 3)
    Q, KK, LG = 16, 32, 112
    for d in range(5):
        e(f"ds_read_b64 {vr(Q+2*d,2)}, v8 offset:{14*3840 + 8*d}")
    for d in range(10):
        e(f"ds_read_b64 {vr(KK+2*d,2)}, v8 offset:{(14-2*(d//5))*3840 + 1280 + 8*(d%5)}")
    GS = 170
    e(f"v_mov_b32 v{GS}, 0")
    for d in range(10):
        unpack2(e, GS + 1, GX + d)
        unpack2(e, GS + 3, GWR + d)
        e(f"v_mul_f32 v{GS+1}, v{GS+1}, v{GS+3}")
        e(f"v_mul_f32 v{GS+2}, v{GS+2}, v{GS+4}")
        e(f"v_cvt_pk_bf16_f32 v{GS+1}, v{GS+1}, v{GS+2}")
        unpack2(e, GS + 2, GS + 1)
        e(f"v_add_f32 v{GS}, v{GS}, v{GS+2}")
        e(f"v_add_f32 v{GS}, v{GS}, v{GS+3}")
    for sh in (8, 4, 2, 1):
        e("s_nop 1")
        e(f"v_add_f32_dpp v{GS}, v{GS}, v{GS} row_ror:{sh} row_mask:0xf bank_mask:0xf")
    e(f"v_mov_b32 v{GS+1}, v{GS}")
    e(f"v_mov_b32 v{GS+2}, v{GS}")
    e("s_nop 1")
    e(f"v_permlane16_swap_b32 v{GS+1}, v{GS+2}")
    e("s_nop 0")
    e(f"v_add_f32 v{GS}, v{GS+1}, v{GS+2}")
    bf16r(e, GS, GS)
    e(f"v_mul_f32 v{GS}, {hex(f32bits(-1.4426950408889634))}, v{GS}")
    e(f"v_exp_f32 v{GS}, v{GS}")
    e("s_nop 0")
    e(f"v_add_f32 v{GS}, 1.0, v{GS}")
    e(f"v_rcp_f32 v{GS}, v{GS}")
    e("s_nop 0")
    bf16r(e, GS, GS)
    e(f"v_lshlrev_b32 v{GS+1}, 2, v9")
    e("v_cmp_eq_u32 vcc, 0, v14")
    e("s_nop 1")
    e("s_mov_b64 exec, vcc")
    e(f"buffer_store_dword v{GS}, v{GS+1}, {SRD(SRD_F)}, 0 offen{SC}")
    e("s_mov_b64 exec, -1")
    for w in range(8):
        if w % 2 == 0:
            e("s_waitcnt lgkmcnt(0)")
            if w < 6:
                for d in range(10):
                    ww = w + 2 + d // 5
                    e(f"ds_read_b64 {vr(KK+10*ww+2*(d%5),2)}, v8 offset:{(14-2*ww)*3840 + 1280 + 8*(d%5)}")
        e(f"v_mov_b32 v{LG+w}, 0")
        for d in range(10):
            e(f"v_dot2_f32_bf16 v{LG+w}, v{Q+d}, v{KK+10*w+d}, v{LG+w}")
    e.nop(4)
    vreads = []
    for w in range(8):
        for d in range(5):
            vreads.append(f"ds_read_b64 {vr(KK+10*w+2*d,2)}, v8 offset:{(14-2*w)*3840 + 2560 + 8*d}")
    for r in vreads[:15]:
        e(r)
    e(f"s_mov_b32 s{S_K0}, {hex(f32bits(20 ** -0.5))}")
    e(f"v_mov_b32 v10, {hex(f32bits(-1e9) & 0xffff0000)}")
    for w in range(8):
        bf16r(e, LG + w, LG + w)
        e(f"v_mul_f32 v{LG+w}, s{S_K0}, v{LG+w}")
        bf16r(e, LG + w, LG + w)
        if w:
            e(f"v_cmp_gt_u32 vcc, {2*w}, v9")
            e("s_nop 1")
            e(f"v_cndmask_b32 v{LG+w}, v{LG+w}, v10, vcc")
    e(f"v_max3_f32 v11, v{LG}, v{LG+1}, v{LG+2}")
    e(f"v_max3_f32 v11, v11, v{LG+3}, v{LG+4}")
    e(f"v_max3_f32 v11, v11, v{LG+5}, v{LG+6}")
    e(f"v_max_f32 v11, v11, v{LG+7}")
    e(f"s_mov_b32 s{S_K1}, {hex(f32bits(1.4426950408889634))}")
    for w in range(8):
        e(f"v_sub_f32 v{LG+w}, v{LG+w}, v11")
        e(f"v_mul_f32 v{LG+w}, s{S_K1}, v{LG+w}")
        e(f"v_exp_f32 v{LG+w}, v{LG+w}")
    e("s_waitcnt lgkmcnt(0)")
    for r in vreads[15:30]:
        e(r)
    e(f"v_add_f32 v12, v{LG}, v{LG+1}")
    for w in range(2, 8):
        e(f"v_add_f32 v12, v12, v{LG+w}")
    e("v_rcp_f32 v12, v12")
    e("s_nop 0")
    for w in range(8):
        e(f"v_mul_f32 v{LG+w}, v{LG+w}, v12")
    PP = 120
    for w in range(4):
        e(f"v_cvt_pk_bf16_f32 v{PP+w}, v{LG+2*w}, v{LG+2*w+1}")
    e("s_waitcnt lgkmcnt(0)")
    for r in vreads[30:]:
        e(r)
    e(f"s_mov_b32 s{S_K2}, 0x05040100")
    e(f"s_mov_b32 s{S_K3}, 0x07060302")
    O = 124
    for r in range(20):
        e(f"v_mov_b32 v{O+r}, 0")
    for wp in range(4):
        if wp == 3:
            e("s_waitcnt lgkmcnt(0)")
        a, b = KK + 10 * (2 * wp), KK + 10 * (2 * wp + 1)
        for d in range(10):
            e(f"v_perm_b32 v{Q+(d%2)*2}, v{b+d}, v{a+d}, s{S_K2}")
            e(f"v_perm_b32 v{Q+(d%2)*2+1}, v{b+d}, v{a+d}, s{S_K3}")
            e(f"v_dot2_f32_bf16 v{O+2*d}, v{Q+(d%2)*2}, v{PP+wp}, v{O+2*d}")
            e(f"v_dot2_f32_bf16 v{O+2*d+1}, v{Q+(d%2)*2+1}, v{PP+wp}, v{O+2*d+1}")
    e.nop(4)
    for d in range(10):
        e(f"v_cvt_pk_bf16_f32 v{KK+d}, v{O+2*d}, v{O+2*d+1}")
    e(f"buffer_store_dwordx4 {vr(KK,4)}, v13, {SRD(SRD_C)}, 0 offen{SC}")
    e(f"buffer_store_dwordx4 {vr(KK+4,4)}, v13, {SRD(SRD_C)}, 0 offen offset:16{SC}")
    e(f"buffer_store_dwordx2 {vr(KK+8,2)}, v13, {SRD(SRD_C)}, 0 offen offset:32{SC}")
    stamp(e, 4)
    stamp_flush(e, 5)
    phase_end(e, NX)
    kernel_tail(e, end, False)
    return name, NVGPR, max(c.NBUF * c.BUFSZ, 116 * 1024)


def stage3(e):
    name = "k3_kernel"
    end = kernel_head(e, name, 256, 3)
    NX = "Lphase4"
    c3 = Cfg(128, 144, 640, 320, 4, 4, 1, 1280, 3456, 3456)
    co = Cfg(128, 160, 640, 320, 4, 2, 2, 1280, 1280, 1280)
    pf = next_prefetch(3)
    e(f"s_lshr_b32 s5, s{S_XCD}, 1")
    e(f"s_and_b32 s3, s{S_XCD}, 1")
    e(f"s_and_b32 s6, s{S_SLOT}, 3")
    e("s_lshl_b32 s5, s5, 2")
    e(f"s_add_u32 s{S_RB}, s5, s6")
    e(f"s_lshr_b32 s4, s{S_SLOT}, 2")
    e(f"s_lshl_b32 s{S_ROW0}, s{S_RB}, 7")
    lwo = e.new("Lwo")
    e("s_cmp_ge_u32 s4, 6")
    e(f"s_cbranch_scc1 {lwo}")

    def srds3(e):
        srd(e, SRD_A, P_WS, WS_X1, S * 1280)
        srd(e, SRD_B, P_W3, 0, 640 * 3456)
        srd(e, SRD_C, P_WS, WS_H3, S * 3456)
        srd(e, SRD_F, P_WS, WS_PART, S * 128)

    e("s_mul_i32 s3, s3, 6")
    e(f"s_add_u32 s{S_CT}, s3, s4")
    e(f"s_mul_i32 s{S_COL0}, s{S_CT}, 144")
    e(f"s_lshl_b32 s{S_FIDX}, s{S_RB}, 4")
    e(f"s_add_u32 s{S_FIDX}, s{S_FIDX}, s{S_CT}")
    e(f"s_add_u32 s{S_FIDX}, s{S_FIDX}, 512")

    def deps3(e, base=256):
        e(f"s_lshl_b32 s{S_T0}, s{S_RB}, 4")
        e(f"s_add_u32 s{S_T0}, s{S_T0}, {base}")
        e("v_and_b32 v4, 7, v1")
        e(f"v_add_u32 v4, s{S_T0}, v4")

    lld3 = e.new("Lld")
    e(f"s_cmp_ge_u32 s{S_WAVE}, 4")
    e(f"s_cbranch_scc1 {lld3}")
    c = c3
    R = Regs(c, 5)
    CS, PR = R.EX, R.EX + 12

    def extras(e, s):
        X, W = R.R[s]
        blocks = []
        for w in range(4):
            b = []
            for u in range(3 if w == 0 else 2):
                t = w + 4 * u
                b.append(f"v_mfma_f32_16x16x32_bf16 {vr(CS+4*u,4)}, {vr(W+4*t,4)}, {vr(R.ONES,4)}, {vr(CS+4*u,4)}")
            blocks.append(b)
        per_wave_blocks(e, blocks)

    def pre(e):
        e(f"s_lshl_b32 s{S_T2}, s{S_WAVE}, 5")
        e(f"s_add_u32 s{S_T2}, s{S_T2}, s{S_ROW0}")
        e(f"v_add_u32 v4, s{S_T2}, v{VJ}")
        e("v_lshlrev_b32 v4, 7, v4")
        e(f"v_lshl_add_u32 v4, v{VG}, 5, v4")
        for i in range(2):
            e(f"buffer_load_dwordx2 {vr(PR+4*i,2)}, v4, {SRD(SRD_F)}, 0 offen offset:{i*2048}{SC}")
            e(f"buffer_load_dwordx2 {vr(PR+4*i+2,2)}, v4, {SRD(SRD_F)}, 0 offen offset:{i*2048+16}{SC}")

    consumer(e, c, R, srds3, (extras, 12), pre, deps=True)
    T = R.R[0][0]
    CSR = R.R[1][0]
    colsum_exchange(e, c, R, CS, 3, CSR)
    for i in range(2):
        e(f"v_add_f32 v{PR+4*i}, v{PR+4*i}, v{PR+4*i+2}")
        e(f"v_add_f32 v{PR+4*i+1}, v{PR+4*i+1}, v{PR+4*i+3}")
    xreduce(e, [PR, PR + 1, PR + 4, PR + 5], T, T + 1)
    MB = CS
    for i in range(2):
        ln_from_sums(e, PR + 4 * i, PR + 4 * i + 1, MB + i, MB + 2 + i, 4)
    e("s_waitcnt lgkmcnt(0)")
    part1_ln(e, c, R, MB, MB + 2, CSR)
    e("s_waitcnt lgkmcnt(0)")
    lp2 = e.new("Lp2")
    e.label(lp2)
    e("s_barrier")
    part2_store(e, c, gelu=True)
    phase_end(e, NX)
    e.label(lld3)
    loader(e, c3, srds3, tail=lambda e: (e("s_barrier"), e(f"s_branch {lp2}")), pf=pf, deps=deps3)
    e.label(lwo)

    def srdso(e):
        srd(e, SRD_A, P_WS, WS_O, S * 1280)
        srd(e, SRD_B, P_WO, 0, 640 * 1280)
        srd(e, SRD_C, P_WS, WS_AO, S * 1280)

    e("s_lshl_b32 s3, s3, 1")
    e("s_add_u32 s3, s3, s4")
    e(f"s_sub_u32 s{S_CT}, s3, 6")
    e(f"s_mul_i32 s{S_COL0}, s{S_CT}, 160")
    e(f"s_lshl_b32 s{S_FIDX}, s{S_RB}, 4")
    e(f"s_add_u32 s{S_FIDX}, s{S_FIDX}, s{S_CT}")
    e(f"s_add_u32 s{S_FIDX}, s{S_FIDX}, 524")
    lldo = e.new("Lld")
    e(f"s_cmp_ge_u32 s{S_WAVE}, 4")
    e(f"s_cbranch_scc1 {lldo}")
    R = Regs(co, 0)
    consumer(e, co, R, srdso, deps=True)
    part1_plain(e, co, R)
    e("s_waitcnt lgkmcnt(0)")
    lp2o = e.new("Lp2")
    e.label(lp2o)
    e("s_barrier")
    part2_store(e, co)
    phase_end(e, NX)
    e.label(lldo)
    loader(e, co, srdso, tail=lambda e: e(f"s_branch {lp2o}"), pf=pf, deps=lambda e: deps3(e, 264))
    kernel_tail(e, end, False)
    return name, NVGPR, c3.NBUF * c3.BUFSZ


def stage4(e):
    name = "k4_kernel"
    end = kernel_head(e, name, 256, 4)
    c = Cfg(64, 80, 1728, 192, 8, 2, 1, 3456, 1280, 1280, WK=2)
    e(f"s_lshr_b32 s5, s{S_XCD}, 1")
    e(f"s_and_b32 s3, s{S_XCD}, 1")
    e(f"s_and_b32 s6, s{S_SLOT}, 7")
    e("s_lshl_b32 s5, s5, 3")
    e(f"s_add_u32 s{S_RB}, s5, s6")
    e(f"s_lshr_b32 s4, s{S_SLOT}, 3")
    e("s_lshl_b32 s3, s3, 2")
    e(f"s_add_u32 s{S_CT}, s3, s4")
    e(f"s_lshl_b32 s{S_ROW0}, s{S_RB}, 6")
    e(f"s_mul_i32 s{S_COL0}, s{S_CT}, 80")

    def deps4(e):
        e(f"s_lshr_b32 s{S_T0}, s{S_RB}, 1")
        e(f"s_lshl_b32 s{S_T0}, s{S_T0}, 4")
        e(f"s_add_u32 s{S_T0}, s{S_T0}, 512")
        e(f"s_lshr_b32 s{S_T1}, s{S_CT}, 1")
        e(f"s_add_u32 s{S_T1}, s{S_T1}, 12")
        e("v_and_b32 v4, 15, v1")
        e("v_cmp_gt_u32 vcc, 12, v4")
        e(f"v_mov_b32 v5, s{S_T1}")
        e("s_nop 0")
        e("v_cndmask_b32 v4, v5, v4, vcc")
        e(f"v_add_u32 v4, s{S_T0}, v4")

    def srds(e):
        srd(e, SRD_A, P_WS, WS_H3, S * 3456)
        srd(e, SRD_B, P_W4, 0, F * 1280)
        srd(e, SRD_C, P_OUT, 0, S * 1280)
        srd(e, SRD_D, P_WS, WS_X1, S * 1280)
        srd(e, SRD_E, P_WS, WS_AO, S * 1280)
        srd(e, SRD_F, P_WS, WS_G, S * 4)

    def preloads(e):
        M = -(-65536 // c.CPO)
        e(f"s_mov_b32 s{S_T2}, {M}")
        e(f"s_lshl_b32 s{S_T0}, s{S_WAVE}, 3")
        e(f"s_add_u32 s{S_T0}, s{S_T0}, s{S_ROW0}")
        e(f"s_lshl_b32 s{S_T0}, s{S_T0}, 2")
        for it in range(c.NI):
            e(f"buffer_load_dwordx4 {vr(VX1+4*it,4)}, v{VGO+it}, {SRD(SRD_D)}, 0 offen{SC}")
            e(f"buffer_load_dwordx4 {vr(VX2+4*it,4)}, v{VGO+it}, {SRD(SRD_E)}, 0 offen{SC}")
            e(f"v_add_u32 v4, {64*it}, v1")
            e(f"v_mul_u32_u24 v5, s{S_T2}, v4")
            e("v_lshrrev_b32 v5, 16, v5")
            e("v_min_u32 v5, 7, v5")
            e("v_lshlrev_b32 v5, 2, v5")
            e(f"buffer_load_dword v{VGT+it}, v5, {SRD(SRD_F)}, s{S_T0} offen{SC}")

    lld = e.new("Lld")
    e(f"s_cmp_ge_u32 s{S_WAVE}, 4")
    e(f"s_cbranch_scc1 {lld}")
    R = Regs(c, 0)
    consumer(e, c, R, srds, None, preloads, deps=True)
    for i in range(c.mt):
        for t in range(c.nt):
            e(f"ds_write_b128 v{VSTG}, {vr(R.acc(i,t),4)} offset:{i*16*c.RS + t*64}")
    e("s_waitcnt lgkmcnt(0)")
    lp2 = e.new("Lp2")
    e.label(lp2)
    e("s_barrier")
    stamp(e, 4)
    DB = 64
    for it in range(c.NI):
        for q in range(4):
            e(f"ds_read_b128 {vr(DB+16*it+4*q,4)}, v{VL+it} offset:{(q>>1)*c.Tm*c.RS + (q&1)*16}")
    e("s_waitcnt vmcnt(0)")
    X, Y, T = 40, 48, 56
    for it in range(c.NI):
        e(f"s_waitcnt lgkmcnt({4*(c.NI-1-it)})")
        d = DB + 16 * it
        G, OMG = VGT + it, 60
        e(f"v_sub_f32 v{OMG}, 1.0, v{G}")
        bf16r(e, OMG, OMG)

        def rnd8(a):
            for q in range(4):
                e(f"v_cvt_pk_bf16_f32 v{T+q}, v{a+2*q}, v{a+2*q+1}")
            for q in range(4):
                unpack2(e, a + 2 * q, T + q)
        for r in range(8):
            e(f"v_add_f32 v{X+r}, v{d+r}, v{d+8+r}")
        rnd8(X)
        for q in range(4):
            unpack2(e, Y + 2 * q, VX1 + 4 * it + q)
        for r in range(8):
            e(f"v_add_f32 v{X+r}, v{X+r}, v{Y+r}")
        rnd8(X)
        for r in range(8):
            e(f"v_mul_f32 v{X+r}, v{X+r}, v{OMG}")
        rnd8(X)
        for q in range(4):
            unpack2(e, Y + 2 * q, VX2 + 4 * it + q)
        for r in range(8):
            e(f"v_mul_f32 v{Y+r}, v{Y+r}, v{G}")
        rnd8(Y)
        for r in range(8):
            e(f"v_add_f32 v{X+r}, v{X+r}, v{Y+r}")
        for q in range(4):
            e(f"v_cvt_pk_bf16_f32 v{d+q}, v{X+2*q}, v{X+2*q+1}")
        e(f"buffer_store_dwordx4 {vr(d,4)}, v{VGO+it}, {SRD(SRD_C)}, 0 offen")
    stamp_flush(e, 5)
    e("s_endpgm")
    e.label(lld)
    loader(e, c, srds, extra=preloads, tail=lambda e: e(f"s_branch {lp2}"), deps=deps4)
    kernel_tail(e, end, True)
    return name, NVGPR, c.NBUF * c.BUFSZ


def main():
    e = E()
    ks = [stage1(e), stage2(e), stage3(e), stage4(e)]
    head = open("cdna_kernels/" + NAME + ".s.ref").read().split("; Override launch")[0]
    out = head
    out += f"; WS qkv {WS_QKV} 2048 1920\n"
    if PERSIST:
        ks = [(NAME + "_kernel", NVGPR, 163840)]
        out += "; @launch grid=(256,1,1) block=(512,1,1) lds=163840\n"
    for n, v, l in ([] if PERSIST else ks):
        out += f"; @launch kernel={n} grid=(256,1,1) block=(512,1,1) lds={l}\n"
    out += '.amdgcn_target "amdgcn-amd-amdhsa--gfx950"\n.text\n'
    out += "\n".join(e.L) + "\n"
    out += '.section .rodata,"a"\n'
    for n, v, l in ks:
        assert v <= 256, (n, v)
        out += kd(n, v)
    path = sys.argv[1] if len(sys.argv) > 1 else "cdna_kernels/" + NAME + ".s"
    open(path, "w").write(out)
    print("wrote", path, [(n, v, l) for n, v, l in ks])


main()
```

```python
import sys, struct, os
OPT = set(os.environ.get('OPT', '').split(','))

NAME = "gated_mix__sliding_local_dilated__mixer_s_mlp__prompt"
S, D, F = 2048, 640, 1728

WS_QKV = 0
WS_HS = 0x800000 + 0x1000
WS_O = 0xB00000
WS_X1 = 0xE00000
WS_H3 = 0x1400000
WS_PART = 0x1C00000
WS_G = 0x1D00000
WS_FLAG = 0x1E00000
WS_STAMP = 0x1F00000
WS_W2I = 0x2000000
WS_WOI = 0x2100000
WS_W3I = 0x2200000
WS_W4I = 0x2500000
NFLAG = 10 * 256
SC = " sc1"


def f32bits(x):
    return struct.unpack("<I", struct.pack("<f", x))[0]


class E:
    def __init__(self):
        self.L = []
        self.n = 0

    def __call__(self, s):
        self.L.append("    " + s)

    def label(self, l):
        self.L.append(l + ":")

    def new(self, p="L"):
        self.n += 1
        return f"{p}_{self.n}"

    def nop(self, n):
        while n > 0:
            k = min(n, 16)
            self(f"s_nop {k-1}")
            n -= k

    def c(self, s):
        self.L.append("    ; " + s)


def vr(a, n=1):
    return f"v{a}" if n == 1 else f"v[{a}:{a+n-1}]"


P_X, P_WQKV, P_WO, P_BX, P_W1, P_W2, P_W3, P_W4 = 16, 18, 20, 22, 24, 26, 28, 30
P_GW, P_OUT, P_DBG, P_WS = 32, 34, 36, 38
SRD_A, SRD_B, SRD_C, SRD_D, SRD_E, SRD_F = 40, 44, 48, 52, 56, 60
S_ROW0, S_COL0, S_WAVE, S_KA, S_KB, S_BUF, S_CNT = 64, 65, 66, 67, 68, 69, 70
S_T0, S_T1, S_T2, S_T3 = 71, 72, 73, 74
S_MA, S_MB, S_RB, S_CT, S_WL = 75, 76, 77, 78, 79
S_M0, S_M1, S_M2, S_M3 = 80, 82, 84, 86
S_K0, S_K1, S_K2, S_K3 = 88, 89, 90, 91
SRD_P = 92
S_XCD, S_SLOT = 96, 97
S_TAG = 98
S_FIDX, S_FNEXT, S_FPREV = 15, 14, 7
SRD = lambda d: f"s[{d}:{d+3}]"

VJ, VG = 2, 3
VA0, VA1 = 8, 9
VSTG, VK0 = 12, 13
LVA, LVB = 176, 184
VPRE = 176
VKX, VKA, VGT = 200, 210, 220
VXP = 222
VPA = 221
VXO = 199
VL, VGO = 232, 233
VBT = 244
NVGPR = 253
TASK = [0]
PUB = [False]


def srd(e, d, ptr, off, nbytes):
    if off:
        e(f"s_add_u32 s{d}, s{ptr}, {off}")
        e(f"s_addc_u32 s{d+1}, s{ptr+1}, 0")
    else:
        e(f"s_mov_b32 s{d}, s{ptr}")
        e(f"s_mov_b32 s{d+1}, s{ptr+1}")
    e(f"s_mov_b32 s{d+2}, {nbytes}")
    e(f"s_mov_b32 s{d+3}, 0x00020000")


def stamp(e, idx):
    if 'stamp' not in OPT: return
    e("s_memtime s[100:101]")
    e("s_waitcnt lgkmcnt(0)")
    e(f"s_mov_b32 s{8+idx}, s100")


def stamp_flush(e, n):
    if 'stamp' not in OPT: return
    stamp(e, n)
    l = e.new("Lst")
    e(f"s_cmp_lg_u32 s{S_WAVE}, 0")
    e(f"s_cbranch_scc1 {l}")
    srd(e, SRD_P, P_WS, WS_STAMP, 256 * 256)
    e("s_lshl_b32 s100, s2, 8")
    e("s_mov_b64 exec, 1")
    e("v_mov_b32 v4, s100")
    for i in range(n + 1):
        e(f"v_mov_b32 v5, s{8+i}")
        e(f"buffer_store_dword v5, v4, {SRD(SRD_P)}, 0 offen offset:{32*TASK[0] + 4*i}")
    e("s_mov_b64 exec, -1")
    e.label(l)


class Cfg:
    def __init__(self, Tm, Tn, K, SB, NBUF, WM, WN, lda, ldb, ldc, STGBASE, s0=0, packed=False, fimg=False, rot=0):
        self.s0 = s0
        self.fimg = fimg
        self.rot = rot
        self.packed = packed
        self.PSB = Tn * 2
        self.BSTEP = 64 * self.PSB
        self.Tm, self.Tn, self.K, self.SB, self.NBUF, self.WM, self.WN = Tm, Tn, K, SB, NBUF, WM, WN
        self.WK = 1
        assert WM * WN == 4
        self.swz = {320: [(3, 0)], 192: [(3, 0)], 384: [(1, 0), (3, 1)], 256: [(0, 0), (1, 1), (3, 2)]}[SB]
        self.lda, self.ldb, self.ldc = lda, ldb, ldc
        self.NS = K // 64
        self.NT = Tn // 16
        self.mt = Tm // 16 // WM
        self.nt = self.NT // WN
        self.ABYTES = Tm * 128
        self.BUFSZ = self.ABYTES + 64 * SB
        self.nAw = Tm // 8 // 4
        self.nBw = SB // 16 // 4
        self.n = self.nAw + self.nBw
        self.CPR = SB // 16
        self.P = NBUF - 1
        assert NBUF * self.BUFSZ <= 163840
        self.RS = self.nt * 32 + 16
        self.CPO = self.nt * 2
        self.LPR = 8 if self.CPO <= 8 else 16
        self.RPI = 64 // self.LPR
        self.RW = self.mt * 16
        self.NI = self.RW // self.RPI
        self.WSTG = self.RW * self.RS
        self.STG = STGBASE
        self.STGEND = STGBASE + 4 * self.WSTG
        assert self.STGEND <= 163840
        last = (s0 + self.NS - 1) % NBUF
        self.LAST = (last * self.BUFSZ, (last + 1) * self.BUFSZ)
        assert self.STGEND <= self.LAST[0] or self.STG >= self.LAST[1]


def overlaps(a, b):
    return a[0] < b[1] and b[0] < a[1]


def n_early(busy, nxt):
    early = 0
    for j in range(nxt.P):
        jj = (nxt.s0 + j) % nxt.NBUF
        sl = (jj * nxt.BUFSZ, (jj + 1) * nxt.BUFSZ)
        if any(overlaps(sl, b) for b in busy):
            break
        early += 1
    return early


def bf16r(e, d, s):
    e(f"v_cvt_pk_bf16_f32 v{d}, v{s}, v{s}")
    e(f"v_lshlrev_b32 v{d}, 16, v{d}")


def unpack2(e, d, s):
    e(f"v_lshlrev_b32 v{d}, 16, v{s}")
    e(f"v_and_b32 v{d+1}, 0xffff0000, v{s}")


def store_addrs(e, c, shift=False):
    wmwn(e, c)
    sh = 3 if c.LPR == 8 else 4
    e(f"s_mul_i32 s{S_T2}, s{S_T0}, {c.RW}")
    e(f"s_add_u32 s{S_T2}, s{S_T2}, s{S_ROW0}")
    e(f"s_mul_i32 s{S_T2}, s{S_T2}, {c.ldc}")
    e(f"s_mul_i32 s{S_T3}, s{S_T1}, {c.nt*16}")
    e(f"s_add_u32 s{S_T3}, s{S_T3}, s{S_COL0}")
    e(f"s_lshl_b32 s{S_T1}, s{S_T3}, 1")
    e(f"s_add_u32 s{S_T2}, s{S_T2}, s{S_T1}")
    e(f"s_mul_i32 s{S_T0}, s{S_WAVE}, {c.WSTG}")
    e(f"s_add_u32 s{S_T0}, s{S_T0}, {c.STG}")
    e(f"s_mov_b32 s{S_T1}, {c.ldc}")
    e(f"v_lshrrev_b32 v5, {sh}, v1")
    e(f"v_and_b32 v6, {c.LPR-1}, v1")
    e(f"v_mul_u32_u24 v7, {c.RS}, v5")
    e("v_lshl_add_u32 v7, v6, 4, v7")
    e(f"v_add_u32 v{VL}, s{S_T0}, v7")
    if shift:
        e(f"s_mov_b32 s{S_K2}, 0x0413")
        e(f"v_lshl_add_u32 v7, v6, 3, s{S_T3}")
        e("v_mul_u32_u24 v7, 410, v7")
        e("v_lshrrev_b32 v7, 16, v7")
        e("v_lshlrev_b32 v7, 2, v7")
        e(f"v_bfe_u32 v7, s{S_K2}, v7, 4")
        e("v_add_u32 v5, v5, v7")
    if c.CPO < c.LPR:
        e(f"v_cmp_gt_u32 vcc, {c.CPO}, v6")
    e("v_lshlrev_b32 v6, 4, v6")
    e(f"v_mad_u32_u24 v7, v5, s{S_T1}, v6")
    e(f"v_add_u32 v{VGO}, s{S_T2}, v7")
    if c.CPO < c.LPR:
        e("v_bfrev_b32 v7, 1")
        e(f"v_cndmask_b32 v{VGO}, v7, v{VGO}, vcc")


def soff(e, c, it):
    if it == 0:
        return "0"
    e(f"s_mov_b32 s{S_K0}, {it*c.RPI*c.ldc}")
    return f"s{S_K0}"


def poll(e, addr_fn):
    addr_fn(e)
    e("v_lshlrev_b32 v4, 3, v4")
    srd(e, SRD_P, P_WS, WS_FLAG, NFLAG * 8)
    lp, l = e.new("Lpoll"), e.new("Lpx")
    e(f"s_mov_b32 s{S_CNT}, 0")
    e.label(lp)
    e(f"buffer_load_dwordx2 v[6:7], v4, {SRD(SRD_P)}, 0 offen sc1")
    e(f"s_add_u32 s{S_CNT}, s{S_CNT}, 1")
    e(f"s_cmp_ge_u32 s{S_CNT}, 0x100000")
    e(f"s_cbranch_scc1 {l}")
    e("s_waitcnt vmcnt(0)")
    e(f"v_cmp_ne_u32 vcc, s{S_TAG}, v6")
    e(f"v_cmp_ne_u32 s[{S_M0}:{S_M0+1}], s{S_TAG+1}, v7")
    e(f"s_or_b64 vcc, vcc, s[{S_M0}:{S_M0+1}]")
    e(f"s_cbranch_scc1 {lp}")
    e.label(l)


def poll_issue(e, addr_fn):
    addr_fn(e)
    e("v_lshlrev_b32 v14, 3, v4")
    srd(e, SRD_P, P_WS, WS_FLAG, NFLAG * 8)
    e(f"buffer_load_dwordx2 v[10:11], v14, {SRD(SRD_P)}, 0 offen sc1")


def poll_check(e):
    lp, l, lc = e.new("Lpoll"), e.new("Lpx"), e.new("Lpc")
    e(f"s_mov_b32 s{S_CNT}, 0")
    e(f"s_branch {lc}")
    e.label(lp)
    e(f"s_sleep {int(os.environ.get('SLP', '4'))}")
    e(f"buffer_load_dwordx2 v[10:11], v14, {SRD(SRD_P)}, 0 offen sc1")
    e(f"s_add_u32 s{S_CNT}, s{S_CNT}, 1")
    e(f"s_cmp_ge_u32 s{S_CNT}, 0x100000")
    e(f"s_cbranch_scc1 {l}")
    e.label(lc)
    e("s_waitcnt vmcnt(0)")
    e(f"v_cmp_ne_u32 vcc, s{S_TAG}, v10")
    e(f"v_cmp_ne_u32 s[{S_M0}:{S_M0+1}], s{S_TAG+1}, v11")
    e(f"s_or_b64 vcc, vcc, s[{S_M0}:{S_M0+1}]")
    e(f"s_cbranch_scc1 {lp}")
    e.label(l)


def fetch_tag(e):
    srd(e, SRD_P, P_DBG, 0, 256)
    lp, lq = e.new("Ltag"), e.new("Ltq")
    e("v_mov_b32 v4, 0")
    e(f"s_mov_b32 s{S_CNT}, 0")
    e.label(lp)
    e(f"buffer_load_dwordx2 v[6:7], v4, {SRD(SRD_P)}, 0 offen sc1")
    e("s_waitcnt vmcnt(0)")
    e(f"v_readfirstlane_b32 s{S_TAG}, v6")
    e(f"v_readfirstlane_b32 s{S_TAG+1}, v7")
    e(f"s_add_u32 s{S_CNT}, s{S_CNT}, 1")
    e(f"s_cmp_ge_u32 s{S_CNT}, 0x100000")
    e(f"s_cbranch_scc1 {lq}")
    e(f"s_cmp_eq_u32 s{S_TAG}, 0")
    e(f"s_cbranch_scc1 {lp}")
    e.label(lq)


def store_flag(e):
    l = e.new("Lfl")
    e(f"s_cmp_lg_u32 s{S_WAVE}, 4")
    e(f"s_cbranch_scc1 {l}")
    srd(e, SRD_P, P_WS, WS_FLAG, NFLAG * 8)
    e(f"s_lshl_b32 s{S_T0}, s{S_FPREV}, 3")
    e(f"s_and_b32 s{S_T1}, s{S_FPREV}, 7")
    e(f"s_lshl_b32 s{S_T1}, s{S_T1}, 5")
    e(f"s_bfe_u32 s{S_T2}, s{S_FPREV}, 0x50003")
    e(f"s_add_u32 s{S_T1}, s{S_T1}, s{S_T2}")
    e(f"s_and_b32 s{S_T2}, s{S_FPREV}, 0xffffff00")
    e(f"s_add_u32 s{S_T1}, s{S_T1}, s{S_T2}")
    e(f"s_add_u32 s{S_T1}, s{S_T1}, 1280")
    e(f"s_lshl_b32 s{S_T1}, s{S_T1}, 3")
    e(f"s_sub_u32 s{S_T1}, s{S_T1}, s{S_T0}")
    e(f"v_mul_u32_u24 v4, s{S_T1}, v1")
    e(f"v_add_u32 v4, s{S_T0}, v4")
    e(f"v_mov_b32 v6, s{S_TAG}")
    e(f"v_mov_b32 v7, s{S_TAG+1}")
    e("s_mov_b64 exec, 3")
    e(f"buffer_store_dwordx2 v[6:7], v4, {SRD(SRD_P)}, 0 offen sc1")
    e("s_mov_b64 exec, -1")
    e.label(l)


def loader_setup(e, c):
    e("v_lshrrev_b32 v2, 3, v1")
    e("v_and_b32 v3, 7, v1")
    e(f"s_mul_i32 s{S_T1}, s{S_WL}, {c.nAw*8}")
    e(f"s_mov_b32 s{S_T2}, {c.lda}")
    if c.fimg:
        e(f"s_lshr_b32 s{S_T1}, s{S_ROW0}, 4")
        e(f"s_mul_i32 s{S_T2}, s{S_WL}, {c.nAw//2}")
        e(f"s_add_u32 s{S_T1}, s{S_T1}, s{S_T2}")
        e(f"s_mul_i32 s{S_T1}, s{S_T1}, {c.K*32}")
        e(f"v_lshl_add_u32 v4, v1, 4, s{S_T1}")
        for i in range(c.nAw):
            e(f"v_add_u32 v{LVA+i}, {(i>>1)*c.K*32 + (i&1)*1024}, v4")
    for i in range(0 if c.fimg else c.nAw):
        e(f"v_add3_u32 v4, v2, s{S_T1}, {8*i}")
        e("v_bfe_u32 v5, v4, 1, 3")
        e("v_xor_b32 v5, v5, v3")
        e("v_lshlrev_b32 v5, 4, v5")
        e(f"v_add_u32 v4, s{S_ROW0}, v4")
        e(f"v_mad_u32_u24 v{LVA+i}, v4, s{S_T2}, v5")
    if c.packed:
        e(f"s_mul_i32 s{S_T1}, s{S_WL}, {c.nBw*1024}")
        e(f"v_lshl_add_u32 v4, v1, 4, s{S_T1}")
        e("v_bfrev_b32 v7, 1")
        for i in range(c.nBw):
            e(f"v_add_u32 v{LVB+i}, {1024*i}, v4")
            e(f"v_cmp_gt_u32 vcc, {c.BSTEP}, v{LVB+i}")
            e("s_nop 1")
            e(f"v_cndmask_b32 v{LVB+i}, v7, v{LVB+i}, vcc")
    M = -(-65536 // c.CPR)
    e(f"s_mul_i32 s{S_T1}, s{S_WL}, {c.nBw*64}")
    e(f"s_lshl_b32 s{S_T3}, s{S_COL0}, 1")
    e(f"s_mov_b32 s{S_T2}, {M}")
    e(f"s_mov_b32 s{S_T0}, {c.ldb}")
    e("v_bfrev_b32 v7, 1")
    for i in range(0 if c.packed else c.nBw):
        e(f"v_add_u32 v4, s{S_T1}, v1")
        if i:
            e(f"v_add_u32 v4, {64*i}, v4")
        e(f"v_mul_u32_u24 v5, s{S_T2}, v4")
        e("v_lshrrev_b32 v5, 16, v5")
        e(f"v_mul_u32_u24 v6, {c.CPR}, v5")
        e("v_sub_u32 v4, v4, v6")
        for sb, db in c.swz:
            e(f"v_bfe_u32 v6, v5, {sb}, 1")
            e(f"v_lshlrev_b32 v6, {db+1}, v6")
            e("v_xor_b32 v4, v4, v6")
        if c.NT * 2 < c.CPR:
            e(f"v_cmp_gt_u32 vcc, {c.NT*2}, v4")
        e("v_lshlrev_b32 v4, 4, v4")
        e(f"v_add_u32 v4, s{S_T3}, v4")
        e(f"v_mad_u32_u24 v{LVB+i}, v5, s{S_T0}, v4")
        if c.NT * 2 < c.CPR:
            e(f"v_cndmask_b32 v{LVB+i}, v7, v{LVB+i}, vcc")
    e(f"s_mul_i32 s{S_MA}, s{S_WL}, {c.nAw*1024}")
    e(f"s_mul_i32 s{S_MB}, s{S_WL}, {c.nBw*1024}")
    e(f"s_add_u32 s{S_MB}, s{S_MB}, {c.ABYTES + c.s0*c.BUFSZ}")
    if c.s0:
        e(f"s_add_u32 s{S_MA}, s{S_MA}, {c.s0*c.BUFSZ}")
    e(f"s_mov_b32 s{S_KA}, 0")
    if c.packed:
        e(f"s_mul_i32 s{S_KB}, s{S_CT}, {c.NS*c.BSTEP}")
    else:
        e(f"s_mov_b32 s{S_KB}, 0")


def touch_contig(e, srdreg, s_start, nbytes):
    nl = -(-nbytes // 128)
    e(f"v_lshl_add_u32 v4, s{S_WL}, 6, v1")
    e("v_lshlrev_b32 v4, 7, v4")
    for i in range(-(-nl // 256)):
        if i:
            e("v_add_u32 v4, 0x8000, v4")
        e(f"v_min_u32 v5, {nbytes-4}, v4")
        e(f"buffer_load_dword v15, v5, {SRD(srdreg)}, {s_start} offen")


def touch_task(e, t):
    if 'notouch' in OPT or not getattr(t, 'share', None):
        return
    c = t.c
    (nA, shA), (nB, shB) = t.share
    abytes = c.Tm * c.K * 2 // nA
    shA(e, S_T0)
    e(f"s_mul_i32 s{S_T0}, s{S_T0}, {abytes}")
    e(f"s_mul_i32 s{S_T1}, s{S_ROW0}, {c.K*2}")
    e(f"s_add_u32 s{S_T0}, s{S_T0}, s{S_T1}")
    touch_contig(e, SRD_A, f"s{S_T0}", abytes)
    shB(e, S_T0)
    if c.packed:
        bbytes = c.NS * c.BSTEP // nB
        e(f"s_mul_i32 s{S_T0}, s{S_T0}, {bbytes}")
        e(f"s_add_u32 s{S_T0}, s{S_T0}, s{S_KB}")
        touch_contig(e, SRD_B, f"s{S_T0}", bbytes)
    else:
        rows = c.K // nB
        w = c.Tn * 2
        per = 2 if w % 128 == 0 else 4
        e(f"s_mul_i32 s{S_T0}, s{S_T0}, {rows*c.ldb}")
        e(f"s_lshl_b32 s{S_T1}, s{S_COL0}, 1")
        e(f"s_add_u32 s{S_T0}, s{S_T0}, s{S_T1}")
        e(f"s_mov_b32 s{S_T1}, {c.ldb}")
        e(f"v_lshl_add_u32 v4, s{S_WL}, 6, v1")
        for i in range(-(-(rows * per) // 256)):
            if i:
                e("v_add_u32 v4, 0x100, v4")
            e(f"v_lshrrev_b32 v5, {per.bit_length()-1}, v4")
            e(f"v_min_u32 v5, {rows-1}, v5")
            e(f"v_and_b32 v6, {per-1}, v4")
            e("v_lshlrev_b32 v6, 7, v6")
            e(f"v_min_u32 v6, {w-4}, v6")
            e(f"v_mad_u32_u24 v5, v5, s{S_T1}, v6")
            e(f"buffer_load_dword v15, v5, {SRD(SRD_B)}, s{S_T0} offen")


def issue(e, c, asc):
    for i in range(c.nAw):
        e(f"s_add_u32 m0, s{S_MA}, {1024*i}")
        e("s_nop 0")
        if 'noload' not in OPT:
            e(f"buffer_load_dwordx4 v{LVA+i}, {SRD(SRD_A)}, s{S_KA} offen{asc} lds")
    for i in range(c.nBw):
        e(f"s_add_u32 m0, s{S_MB}, {1024*i}")
        e("s_nop 0")
        if 'noload' not in OPT:
            e(f"buffer_load_dwordx4 v{LVB+i}, {SRD(SRD_B)}, s{S_KB} offen{SC if c.packed else ''} lds")
    e(f"s_add_u32 s{S_KA}, s{S_KA}, {2048 if c.fimg else 128}")
    e(f"s_add_u32 s{S_KB}, s{S_KB}, {c.BSTEP if c.packed else 64*c.ldb}")
    e(f"s_add_u32 s{S_MA}, s{S_MA}, {c.BUFSZ}")
    e(f"s_add_u32 s{S_MB}, s{S_MB}, {c.BUFSZ}")
    e(f"s_cmp_ge_u32 s{S_MA}, {c.NBUF*c.BUFSZ}")
    e(f"s_cselect_b32 s{S_BUF}, {c.NBUF*c.BUFSZ}, 0")
    e(f"s_sub_u32 s{S_MA}, s{S_MA}, s{S_BUF}")
    e(f"s_sub_u32 s{S_MB}, s{S_MB}, s{S_BUF}")


def issue_n(e, c, asc, k):
    if k == 0:
        return
    if k == 1:
        issue(e, c, asc)
        return
    lp = e.new("Liss")
    e(f"s_mov_b32 s{S_CNT}, {k}")
    e.label(lp)
    issue(e, c, asc)
    e(f"s_sub_u32 s{S_CNT}, s{S_CNT}, 1")
    e(f"s_cmp_lg_u32 s{S_CNT}, 0")
    e(f"s_cbranch_scc1 {lp}")


PUBJ = int(os.environ.get("PUBJ", "3"))


def loader_main(e, c, asc, E, pub=False, hook=None):
    e(f"s_waitcnt vmcnt({c.n*(E-1)})")
    e("s_barrier")
    issue_n(e, c, asc, c.P - E + 1)
    lm = e.new("Lldm")
    e(f"s_mov_b32 s{S_CNT}, {c.NS - c.P - 1}")
    e.label(lm)
    e(f"s_waitcnt vmcnt({c.n*(c.P-1)})")
    e("s_barrier")
    if pub:
        l = e.new("Lnp")
        e(f"s_cmp_lg_u32 s{S_CNT}, {c.NS - c.P - PUBJ}")
        e(f"s_cbranch_scc1 {l}")
        store_flag(e)
        e.label(l)
    issue(e, c, asc)
    e(f"s_sub_u32 s{S_CNT}, s{S_CNT}, 1")
    e(f"s_cmp_lg_u32 s{S_CNT}, 0")
    e(f"s_cbranch_scc1 {lm}")
    nx = hook(e) if hook else 0
    for j in range(c.P):
        e(f"s_waitcnt vmcnt({c.n*(c.P-1-j) + nx})")
        e("s_barrier")


class Regs:
    def __init__(self, c, nextra):
        self.ACC = 16
        p = self.ACC + c.mt * c.nt * 4
        self.R = []
        for s in range(2):
            X = p; p += c.mt * 4
            W = p; p += c.nt * 4
            self.R.append((X, W))
        self.EX = p; p += nextra * 4
        self.ONES = p; p += 4
        assert p <= VPRE, p
        self.c = c

    def acc(self, i, t):
        return self.ACC + (i * self.c.nt + t) * 4


def wmwn(e, c):
    if c.WN == 2:
        e(f"s_lshr_b32 s{S_T0}, s{S_WAVE}, 1")
        e(f"s_and_b32 s{S_T1}, s{S_WAVE}, 1")
    else:
        e(f"s_mov_b32 s{S_T0}, s{S_WAVE}")
        e(f"s_mov_b32 s{S_T1}, 0")


def gtile(e, c, t, dst):
    e(f"s_mul_i32 s{dst}, s{S_WAVE}, {c.rot}")
    e(f"s_add_u32 s{dst}, s{dst}, {t}")
    e(f"s_cmp_ge_u32 s{dst}, {c.nt}")
    e(f"s_cselect_b32 s{S_K3}, {c.nt}, 0")
    e(f"s_sub_u32 s{dst}, s{dst}, s{S_K3}")


def consumer_main(e, c, R, extras=None, nzero=0, post=None, mid=None):
    pub = PUB[0]
    e.c("---- consumer ----")
    e(f"v_and_b32 v{VJ}, 15, v1")
    e(f"v_lshrrev_b32 v{VG}, 4, v1")
    wmwn(e, c)
    if c.fimg:
        e("v_lshlrev_b32 v4, 4, v1")
    else:
        e(f"v_bfe_u32 v4, v{VJ}, 1, 3")
        e(f"v_xor_b32 v4, v4, v{VG}")
        e("v_lshlrev_b32 v4, 4, v4")
        e(f"v_lshl_add_u32 v4, v{VJ}, 7, v4")
    e(f"s_mul_i32 s{S_T2}, s{S_T0}, {c.mt*2048}")
    if c.s0:
        e(f"s_add_u32 s{S_T2}, s{S_T2}, {c.s0*c.BUFSZ}")
    e(f"v_add_u32 v{VA0}, s{S_T2}, v4")
    if not c.fimg:
        e(f"v_xor_b32 v{VA1}, 64, v{VA0}")
    if c.packed:
        e(f"v_lshrrev_b32 v4, 2, v{VJ}")
        e(f"v_and_b32 v5, 1, v{VG}")
        e("v_lshl_add_u32 v4, v5, 2, v4")
        e(f"v_lshrrev_b32 v5, 1, v{VG}")
        e("v_lshl_add_u32 v4, v5, 4, v4")
        e(f"v_mul_u32_u24 v4, {c.PSB}, v4")
        e(f"v_and_b32 v5, 3, v{VJ}")
        e("v_lshl_add_u32 v4, v5, 3, v4")
        e(f"v_add_u32 v{VBT}, {c.ABYTES + c.s0*c.BUFSZ}, v4")
        if c.rot:
            e(f"v_mov_b32 v4, v{VBT}")
            for t in range(c.nt):
                gtile(e, c, t, S_T2)
                e(f"s_lshl_b32 s{S_T2}, s{S_T2}, 5")
                e(f"v_add_u32 v{VBT+t}, s{S_T2}, v4")
    else:
        e(f"v_lshrrev_b32 v4, 2, v{VJ}")
        e(f"v_lshl_add_u32 v4, v{VG}, 3, v4")
        e("v_mov_b32 v6, 0")
        for sb, db in c.swz:
            e(f"v_bfe_u32 v5, v4, {sb}, 1")
            e(f"v_lshl_or_b32 v6, v5, {db}, v6")
        e(f"v_mul_u32_u24 v4, {c.SB}, v4")
        e(f"v_and_b32 v5, 3, v{VJ}")
        e("v_lshl_add_u32 v4, v5, 3, v4")
        e(f"v_add_u32 v4, {c.ABYTES + c.s0*c.BUFSZ}, v4")
        e(f"s_mul_i32 s{S_T3}, s{S_T1}, {c.nt}")
        for t in range(c.nt):
            e(f"s_add_u32 s{S_T2}, s{S_T3}, {t}")
            e(f"v_xor_b32 v5, s{S_T2}, v6")
            e(f"v_lshl_add_u32 v{VBT+t}, v5, 5, v4")
    e(f"s_mul_i32 s{S_T2}, s{S_WAVE}, {c.WSTG}")
    e(f"s_add_u32 s{S_T2}, s{S_T2}, {c.STG}")
    e(f"v_mul_u32_u24 v4, {c.RS}, v{VJ}")
    e(f"v_lshl_add_u32 v4, v{VG}, 3, v4")
    e(f"v_add_u32 v{VSTG}, s{S_T2}, v4")
    for r in range(R.ACC, R.ACC + c.mt * c.nt * 4):
        e(f"v_mov_b32 v{r}, 0")
    if extras:
        for r in range(R.EX, R.EX + nzero):
            e(f"v_mov_b32 v{r}, 0")
        for r in range(R.ONES, R.ONES + 4):
            e(f"v_mov_b32 v{r}, 0x3f803f80")

    def reads(s, ks):
        X, W = R.R[s]
        out = []
        va = VA0 if (ks == 0 or c.fimg) else VA1
        for i in range(c.mt):
            out.append(f"ds_read_b128 {vr(X+4*i,4)}, v{va} offset:{i*2048 + (1024*ks if c.fimg else 0)}")
        for t in range(c.nt):
            for h in range(2):
                if c.packed and c.rot:
                    out.append(f"ds_read_b64_tr_b16 {vr(W+4*t+2*h,2)}, v{VBT+t} offset:{(32*ks+8*h)*c.PSB}")
                elif c.packed:
                    out.append(f"ds_read_b64_tr_b16 {vr(W+4*t+2*h,2)}, v{VBT} offset:{(32*ks+8*h)*c.PSB + t*32}")
                else:
                    out.append(f"ds_read_b64_tr_b16 {vr(W+4*t+2*h,2)}, v{VBT+t} offset:{(32*ks+4*h)*c.SB}")
        return out

    def mfmas(s):
        X, W = R.R[s]
        out = []
        for t in range(c.nt):
            for i in range(c.mt):
                a = R.acc(i, t)
                out.append(f"v_mfma_f32_16x16x32_bf16 {vr(a,4)}, {vr(W+4*t,4)}, {vr(X+4*i,4)}, {vr(a,4)}")
        if extras:
            out += extras(s)
        return out

    def interleave(ms, rs):
        if 'nomfma' in OPT: ms = []
        k = 0
        per = -(-len(rs) // max(1, len(ms) - 2)) if rs else 0
        for m in ms:
            e(m)
            for _ in range(per):
                if k < len(rs):
                    e(rs[k]); k += 1
        while k < len(rs):
            e(rs[k]); k += 1

    def advance():
        e(f"s_add_u32 s{S_BUF}, s{S_BUF}, {c.BUFSZ}")
        e(f"s_cmp_ge_u32 s{S_BUF}, {c.NBUF*c.BUFSZ}")
        e(f"s_cselect_b32 s{S_T2}, {c.NBUF*c.BUFSZ}, 0")
        e(f"s_sub_u32 s{S_BUF}, s{S_BUF}, s{S_T2}")
        e(f"s_sub_u32 s{S_T2}, {c.BUFSZ}, s{S_T2}")
        for v in ([VA0] if c.fimg else [VA0, VA1]) + [VBT + t for t in range(1 if (c.packed and not c.rot) else c.nt)]:
            e(f"v_add_u32 v{v}, s{S_T2}, v{v}")

    e(f"s_mov_b32 s{S_BUF}, {c.s0*c.BUFSZ}")
    stamp(e, 1)
    e("s_barrier")
    stamp(e, 2)
    for r in reads(0, 0):
        e(r)
    if post:
        post(e)
    lp = e.new("Lc")

    def body(last):
        e("s_waitcnt lgkmcnt(0)")
        interleave(mfmas(0), reads(1, 1))
        if not last:
            advance()
        e("s_waitcnt lgkmcnt(0)")
        if not last:
            if pub:
                l = e.new("Ldr")
                e(f"s_cmp_lg_u32 s{S_CNT}, {c.NS - PUBJ}")
                e(f"s_cbranch_scc1 {l}")
                e("s_waitcnt vmcnt(0)")
                e.label(l)
            if mid:
                l = e.new("Lmid")
                e(f"s_cmp_lg_u32 s{S_CNT}, {c.NS - mid[0]}")
                e(f"s_cbranch_scc1 {l}")
                mid[1](e)
                e.label(l)
            e("s_barrier")
            interleave(mfmas(1), reads(0, 0))
        else:
            interleave(mfmas(1), [])
    e(f"s_mov_b32 s{S_CNT}, {c.NS-1}")
    e.label(lp)
    body(False)
    e(f"s_sub_u32 s{S_CNT}, s{S_CNT}, 1")
    e(f"s_cmp_lg_u32 s{S_CNT}, 0")
    e(f"s_cbranch_scc1 {lp}")
    body(True)
    e.nop(10)
    stamp(e, 3)


def stage_write(e, c, i, t, p):
    e(f"ds_write_b64 v{VSTG}, {vr(p,2)} offset:{i*16*c.RS + t*32}")


def stage_plain(e, c, R):
    T = R.R[0][0]
    k = 0
    for i in range(c.mt):
        for t in range(c.nt):
            a = R.acc(i, t)
            p = T + 2 * (k % 8); k += 1
            e(f"v_cvt_pk_bf16_f32 v{p}, v{a}, v{a+1}")
            e(f"v_cvt_pk_bf16_f32 v{p+1}, v{a+2}, v{a+3}")
            stage_write(e, c, i, t, p)


def stage_read(e, c, dst):
    e("s_waitcnt lgkmcnt(0)")
    for it in range(c.NI):
        e(f"ds_read_b128 {vr(dst+4*it,4)}, v{VL} offset:{it*c.RPI*c.RS}")


GELU_C0 = 2.0 * 0.7978845608028654 * 1.4426950408889634
GELU_C1 = GELU_C0 * 0.044715
X8, Y8, T8 = 40, 48, 56


def ln_gelu_tile(e, a, cs, vmb, vrs, T, p):
    for r in range(4):
        e(f"v_fma_f32 v{a+r}, -v{vmb}, v{cs+r}, v{a+r}")
    e(f"v_pk_mul_f32 {vr(a,2)}, {vr(a,2)}, {vr(vrs,2)}")
    e(f"v_pk_mul_f32 {vr(a+2,2)}, {vr(a+2,2)}, {vr(vrs,2)}")
    e(f"v_cvt_pk_bf16_f32 v{T+4}, v{a}, v{a+1}")
    e(f"v_cvt_pk_bf16_f32 v{T+5}, v{a+2}, v{a+3}")
    unpack2(e, a, T + 4)
    unpack2(e, a + 2, T + 5)
    for h in (0, 2):
        e(f"v_pk_mul_f32 {vr(T+h,2)}, {vr(a+h,2)}, {vr(a+h,2)}")
    for h in (0, 2):
        e(f"v_pk_fma_f32 {vr(T+h,2)}, {vr(T+h,2)}, {vr(VKC,2)}, {vr(VKC+2,2)}")
    for h in (0, 2):
        e(f"v_pk_mul_f32 {vr(T+h,2)}, {vr(T+h,2)}, {vr(a+h,2)}")
    for r in range(4):
        e(f"v_exp_f32 v{T+r}, v{T+r}")
    e("s_nop 0")
    for h in (0, 2):
        e(f"v_pk_add_f32 {vr(T+h,2)}, {vr(T+h,2)}, {vr(VKC+4,2)}")
    for r in range(4):
        e(f"v_rcp_f32 v{T+r}, v{T+r}")
    e("s_nop 0")
    for h in (0, 2):
        e(f"v_pk_mul_f32 {vr(a+h,2)}, {vr(a+h,2)}, {vr(T+h,2)}")
    e(f"v_cvt_pk_bf16_f32 v{p}, v{a}, v{a+1}")
    e(f"v_cvt_pk_bf16_f32 v{p+1}, v{a+2}, v{a+3}")


VKC = 236


def gelu_consts(e):
    for h in range(2):
        e(f"v_mov_b32 v{VKC+h}, {hex(f32bits(-GELU_C1))}")
        e(f"v_mov_b32 v{VKC+2+h}, {hex(f32bits(-GELU_C0))}")
        e(f"v_mov_b32 v{VKC+4+h}, 1.0")


def rnd8(e, a):
    for q in range(4):
        e(f"v_cvt_pk_bf16_f32 v{T8+q}, v{a+2*q}, v{a+2*q+1}")
    for q in range(4):
        unpack2(e, a + 2 * q, T8 + q)


def ln_from_sums(e, vsum, vsq, vmb, vrs, t):
    e(f"v_mul_f32 v{vsum}, {hex(f32bits(1.0/640))}, v{vsum}")
    e(f"v_mul_f32 v{vsq}, {hex(f32bits(1.0/640))}, v{vsq}")
    e(f"v_fma_f32 v{vsq}, -v{vsum}, v{vsum}, v{vsq}")
    e(f"v_max_f32 v{vsq}, 0, v{vsq}")
    bf16r(e, vmb, vsum)
    bf16r(e, t, vsq)
    e(f"v_add_f32 v{t}, {hex(f32bits(1e-5))}, v{t}")
    bf16r(e, t, t)
    e(f"v_sqrt_f32 v{t}, v{t}")
    e("s_nop 0")
    bf16r(e, t, t)
    e(f"v_rcp_f32 v{vrs}, v{t}")
    e("s_nop 0")


def xreduce(e, regs, t0, t1):
    for op in ("v_permlane32_swap_b32", "v_permlane16_swap_b32"):
        for r in regs:
            e(f"v_mov_b32 v{t0}, v{r}")
            e(f"v_mov_b32 v{t1}, v{r}")
            e("s_nop 1")
            e(f"{op} v{t0}, v{t1}")
            e("s_nop 0")
            e(f"v_add_f32 v{r}, v{t0}, v{t1}")


class Task:
    pass


def decode_small(e):
    e(f"s_lshr_b32 s5, s{S_XCD}, 1")
    e(f"s_and_b32 s3, s{S_XCD}, 1")
    e(f"s_and_b32 s6, s{S_SLOT}, 7")
    e("s_lshl_b32 s5, s5, 3")
    e(f"s_add_u32 s{S_RB}, s5, s6")
    e(f"s_lshr_b32 s4, s{S_SLOT}, 3")
    e("s_lshl_b32 s3, s3, 2")
    e(f"s_add_u32 s{S_CT}, s3, s4")
    e(f"s_lshl_b32 s{S_ROW0}, s{S_RB}, 6")
    e(f"s_mul_i32 s{S_COL0}, s{S_CT}, 80")
    e(f"s_lshl_b32 s{S_FNEXT}, s{S_RB}, 3")
    e(f"s_add_u32 s{S_FNEXT}, s{S_FNEXT}, s{S_CT}")


def add_col_deps(e, base):
    e("v_and_b32 v5, 31, v1")
    e(f"s_lshl_b32 s{S_T0}, s{S_CT}, 5")
    e(f"s_add_u32 s{S_T0}, s{S_T0}, {base + 1280}")
    e(f"v_add_u32 v5, s{S_T0}, v5")
    e("v_cmp_gt_u32 vcc, 32, v1")
    e("s_nop 1")
    e("v_cndmask_b32 v4, v5, v4, vcc")


def build_tasks():
    KB = 1024
    T = {}
    t = Task(); T[1] = t
    t.c = Cfg(64, 80, 640, 192, 5, 4, 1, 1280, 1280, 1280, 100 * KB)
    t.asc = ""
    t.decode = decode_small
    t.deps = None
    t.srd_ab = lambda e: (srd(e, SRD_A, P_X, 0, S * 1280), srd(e, SRD_B, P_W1, 0, 640 * 1280))
    t.srd_c = lambda e: srd(e, SRD_C, P_WS, WS_HS, S * 1280)
    t.shift = True
    t.nbar = 0
    t = Task(); T[2] = t
    t.c = Cfg(128, 128, 640, 256, 5, 2, 2, 1280, 3840, 3840, 90 * KB)
    t.asc = ""

    def dec2(e):
        e(f"s_lshr_b32 s5, s{S_XCD}, 2")
        e(f"s_and_b32 s3, s{S_XCD}, 3")
        e(f"s_and_b32 s6, s{S_SLOT}, 7")
        e("s_lshl_b32 s5, s5, 3")
        e(f"s_add_u32 s{S_RB}, s5, s6")
        e(f"s_lshr_b32 s4, s{S_SLOT}, 3")
        e("s_lshl_b32 s4, s4, 2")
        e(f"s_add_u32 s{S_CT}, s4, s3")
        e(f"s_lshl_b32 s{S_FNEXT}, s{S_RB}, 4")
        e(f"s_add_u32 s{S_FNEXT}, s{S_FNEXT}, s{S_CT}")
        e(f"s_add_u32 s{S_FNEXT}, s{S_FNEXT}, 256")
        e(f"s_min_u32 s{S_CT}, s{S_CT}, 14")
        e(f"s_lshl_b32 s{S_ROW0}, s{S_RB}, 7")
        e(f"s_lshl_b32 s{S_COL0}, s{S_CT}, 7")
    t.decode = dec2
    t.deps = None
    t.srd_ab = lambda e: (srd(e, SRD_A, P_X, 0, S * 1280), srd(e, SRD_B, P_WQKV, 0, 640 * 3840))
    t.srd_c = lambda e: srd(e, SRD_C, P_WS, WS_QKV, S * 3840)
    t.shift = False
    t.nbar = 0
    t = Task(); T[3] = t
    t.c = Cfg(64, 80, 640, 192, 5, 4, 1, 1280, 1280, 1280, 100 * KB, packed=True, fimg=True)
    t.asc = SC
    t.decode = lambda e: (decode_small(e), e(f"s_add_u32 s{S_FNEXT}, s{S_FNEXT}, 512"))

    def deps3(e):
        e("v_lshrrev_b32 v4, 3, v1")
        e("v_min_u32 v4, 2, v4")
        e(f"s_sub_u32 s{S_T0}, s{S_RB}, 1")
        e(f"v_add_u32 v4, s{S_T0}, v4")
        e("v_max_i32 v4, 0, v4")
        e("v_min_i32 v4, 31, v4")
        e("v_and_b32 v5, 7, v1")
        e("v_lshl_add_u32 v4, v4, 3, v5")
        add_col_deps(e, 0)
    t.deps = deps3
    t.srd_ab = lambda e: (srd(e, SRD_A, P_WS, WS_HS, S * 1280), srd(e, SRD_B, P_WS, WS_W2I, 640 * 1280))
    t.srd_c = lambda e: (srd(e, SRD_C, P_WS, WS_X1, S * 1280), srd(e, SRD_D, P_X, 0, S * 1280), srd(e, SRD_F, P_WS, WS_PART, S * 128))
    t.shift = False
    t.nbar = 0
    t = Task(); T[5] = t
    t.c = Cfg(128, 112, 640, 256, 5, 4, 1, 1280, 3456, 3456, 96 * KB, s0=3, packed=True, fimg=True, rot=2)
    t.asc = SC

    def dec5(e):
        e(f"s_lshr_b32 s5, s{S_XCD}, 1")
        e(f"s_and_b32 s3, s{S_XCD}, 1")
        e(f"s_and_b32 s6, s{S_SLOT}, 3")
        e("s_lshl_b32 s5, s5, 2")
        e(f"s_add_u32 s{S_RB}, s5, s6")
        e(f"s_lshr_b32 s4, s{S_SLOT}, 2")
        e("s_lshl_b32 s3, s3, 3")
        e(f"s_add_u32 s{S_CT}, s3, s4")
        e(f"s_lshl_b32 s{S_ROW0}, s{S_RB}, 7")
        e(f"s_mul_i32 s{S_COL0}, s{S_CT}, 27")
        e(f"s_lshr_b32 s{S_COL0}, s{S_COL0}, 1")
        e(f"s_lshl_b32 s{S_COL0}, s{S_COL0}, 3")
        e(f"s_lshl_b32 s{S_FNEXT}, s{S_RB}, 4")
        e(f"s_add_u32 s{S_FNEXT}, s{S_FNEXT}, s{S_CT}")
        e(f"s_add_u32 s{S_FNEXT}, s{S_FNEXT}, 1024")
    t.decode = dec5

    def deps5(e):
        e(f"s_lshl_b32 s{S_T0}, s{S_RB}, 4")
        e(f"s_add_u32 s{S_T0}, s{S_T0}, 512")
        e("v_and_b32 v4, 15, v1")
        e(f"v_add_u32 v4, s{S_T0}, v4")
        e("v_and_b32 v5, 15, v1")
        e(f"s_and_b32 s{S_T0}, s{S_CT}, 1")
        e(f"s_lshr_b32 s{S_T1}, s{S_CT}, 1")
        e(f"s_lshl_b32 s{S_T1}, s{S_T1}, 5")
        e(f"s_add_u32 s{S_T0}, s{S_T0}, s{S_T1}")
        e(f"s_add_u32 s{S_T0}, s{S_T0}, {512 + 1280}")
        e(f"v_lshl_add_u32 v5, v5, 1, s{S_T0}")
        e("v_cmp_gt_u32 vcc, 32, v1")
        e("s_nop 1")
        e("v_cndmask_b32 v4, v5, v4, vcc")
    t.deps = deps5
    t.srd_ab = lambda e: (srd(e, SRD_A, P_WS, WS_X1, S * 1280), srd(e, SRD_B, P_WS, WS_W3I, 16 * 640 * 224))
    t.srd_c = lambda e: (srd(e, SRD_C, P_WS, WS_H3, S * 3456), srd(e, SRD_F, P_WS, WS_PART, S * 128))
    t.shift = False
    t.nbar = 1
    t = Task(); T[6] = t
    t.c = Cfg(64, 80, 640, 192, 5, 4, 1, 1280, 1280, 1280, 100 * KB, packed=True, fimg=True)
    t.asc = SC
    t.decode = decode_small

    def deps6(e):
        e(f"s_lshl_b32 s{S_T0}, s{S_RB}, 3")
        e(f"s_add_u32 s{S_T0}, s{S_T0}, 768")
        e("v_and_b32 v4, 7, v1")
        e(f"v_add_u32 v4, s{S_T0}, v4")
    t.deps = deps6
    t.srd_ab = lambda e: (srd(e, SRD_A, P_WS, WS_O, S * 1280), srd(e, SRD_B, P_WS, WS_WOI, 640 * 1280))
    t.srd_c = lambda e: srd(e, SRD_F, P_WS, WS_G, S * 4)
    t.shift = False
    t.nbar = 0
    t = Task(); T[7] = t
    t.c = Cfg(64, 80, 1728, 192, 8, 4, 1, 3456, 1280, 1280, 100 * KB, packed=True, fimg=True)
    t.asc = SC
    t.decode = decode_small

    def deps7(e):
        e(f"s_lshr_b32 s{S_T0}, s{S_RB}, 1")
        e(f"s_lshl_b32 s{S_T0}, s{S_T0}, 4")
        e(f"s_add_u32 s{S_T0}, s{S_T0}, 1024")
        e("v_and_b32 v4, 15, v1")
        e(f"v_add_u32 v4, s{S_T0}, v4")
        add_col_deps(e, 768)
    t.deps = deps7
    t.srd_ab = lambda e: (srd(e, SRD_A, P_WS, WS_H3, S * 3456), srd(e, SRD_B, P_WS, WS_W4I, F * 1280))
    t.srd_c = lambda e: srd(e, SRD_C, P_OUT, 0, S * 1280)
    t.shift = False
    t.nbar = 0
    hi3 = lambda e, d: e(f"s_lshr_b32 s{d}, s{S_SLOT}, 3")
    lo3 = lambda e, d: e(f"s_and_b32 s{d}, s{S_SLOT}, 7")
    hi2 = lambda e, d: e(f"s_lshr_b32 s{d}, s{S_SLOT}, 2")
    lo2 = lambda e, d: e(f"s_and_b32 s{d}, s{S_SLOT}, 3")
    for k in (2, 3, 6, 7):
        T[k].share = ((4, hi3), (8, lo3))
    T[5].share = ((8, hi2), (4, lo2))
    return T


VPK = 120


def pack_load(e, jobs, VPK=120, NSL=6):
    slot = 0
    for (ptr, nbytes, ld, rows, cpr, setup, img) in jobs:
        setup(e)
        srd(e, SRD_P, ptr, 0, nbytes)
        M = -(-65536 // cpr)
        nch = rows * cpr
        for sidx in range(-(-nch // 256)):
            d = VPK + 4 * slot
            o = VPK + 4 * NSL + slot
            e(f"v_add_u32 v4, {256*sidx}, v0")
            e(f"v_mul_u32_u24 v5, {M}, v4")
            e("v_lshrrev_b32 v5, 16, v5")
            e(f"v_mul_u32_u24 v6, {cpr}, v5")
            e("v_sub_u32 v6, v4, v6")
            e("v_lshlrev_b32 v6, 4, v6")
            e(f"v_cmp_gt_u32 vcc, {nch}, v4")
            e(f"v_add_u32 v5, s{S_T0}, v5")
            e(f"v_mul_u32_u24 v7, {ld}, v5")
            e(f"v_add3_u32 v7, v7, v6, s{S_T1}")
            e("v_bfrev_b32 v4, 1")
            e("v_cndmask_b32 v7, v4, v7, vcc")
            e(f"buffer_load_dwordx4 {vr(d,4)}, v7, {SRD(SRD_P)}, 0 offen")
            e("v_bfe_u32 v7, v5, 2, 1")
            e(f"v_bfe_u32 v{o}, v5, 3, 1")
            e("v_and_b32 v5, 0xfffffff3, v5")
            e("v_lshl_or_b32 v5, v7, 3, v5")
            e(f"v_lshl_or_b32 v5, v{o}, 2, v5")
            e(f"v_mul_u32_u24 v5, {cpr*16}, v5")
            e(f"v_add3_u32 v5, v5, v6, s{S_T2}")
            e(f"v_cndmask_b32 v{o}, v4, v5, vcc")
            slot += 1
    return slot


def pack_store(e, nslot, VPK=120, NSL=6, wait=0):
    srd(e, SRD_P, P_WS, 0, 0x2800000)
    if wait is not None:
        e(f"s_waitcnt vmcnt({wait})")
    for slot in range(nslot):
        e(f"buffer_store_dwordx4 {vr(VPK+4*slot,4)}, v{VPK+4*NSL+slot}, {SRD(SRD_P)}, 0 offen{SC}")


def job_small(ptr, K, img):
    rows = K // 32
    def setup(e):
        e(f"s_mul_i32 s{S_T0}, s{S_RB}, {rows}")
        e(f"s_mul_i32 s{S_T1}, s{S_CT}, 160")
        e(f"s_mul_i32 s{S_T2}, s{S_CT}, {K*160}")
        e(f"s_add_u32 s{S_T2}, s{S_T2}, {img}")
    return (ptr, K * 1280, 1280, rows, 10, setup, img)


def job_w3():
    def setup(e):
        e(f"s_and_b32 s{S_T3}, s{S_RB}, 1")
        e(f"s_lshl_b32 s{S_T2}, s{S_CT}, 1")
        e(f"s_add_u32 s{S_T3}, s{S_T3}, s{S_T2}")
        e(f"s_lshr_b32 s{S_T0}, s{S_RB}, 1")
        e(f"s_mul_i32 s{S_T0}, s{S_T0}, 40")
        e(f"s_mul_i32 s{S_T1}, s{S_T3}, 27")
        e(f"s_lshr_b32 s{S_T1}, s{S_T1}, 1")
        e(f"s_lshl_b32 s{S_T1}, s{S_T1}, 4")
        e(f"s_mul_i32 s{S_T2}, s{S_T3}, {640*224}")
        e(f"s_add_u32 s{S_T2}, s{S_T2}, {WS_W3I}")
    return (P_W3, 640 * 3456, 3456, 40, 14, setup, WS_W3I)


VF4, VF2, VFB, VG1 = 234, 235, 242, 243


def fimg_addrs(e, c, Kout, shift=False):
    e(f"s_mul_i32 s{S_T0}, s{S_WAVE}, {c.RW}")
    e(f"s_add_u32 s{S_T0}, s{S_T0}, s{S_ROW0}")
    if shift:
        e(f"s_lshr_b32 s{S_T1}, s{S_CT}, 1")
        e(f"s_lshl_b32 s{S_T1}, s{S_T1}, 2")
        e(f"s_lshr_b32 s{S_T1}, 0x0413, s{S_T1}")
        e(f"s_and_b32 s{S_T1}, s{S_T1}, 15")
        e(f"s_add_u32 s{S_T0}, s{S_T0}, s{S_T1}")
        e(f"s_sub_u32 s{S_T0}, s{S_T0}, 2")
    e("v_and_b32 v4, 15, v1")
    e(f"v_add_u32 v4, s{S_T0}, v4")
    if shift:
        e(f"v_cmp_gt_u32 vcc, {S}, v4")
    e("v_lshrrev_b32 v5, 4, v4")
    e(f"v_mul_u32_u24 v5, {Kout*32}, v5")
    e("v_and_b32 v4, 15, v4")
    e("v_lshl_add_u32 v5, v4, 4, v5")
    e(f"s_lshl_b32 s{S_T1}, s{S_COL0}, 5")
    e(f"v_add_u32 v5, s{S_T1}, v5")
    e("v_lshrrev_b32 v6, 4, v1")
    e("v_and_b32 v7, 1, v6")
    e("v_lshrrev_b32 v6, 1, v6")
    e("v_lshl_add_u32 v4, v6, 8, v5")
    e(f"v_lshl_add_u32 v{VF4}, v7, 9, v4")
    e(f"v_lshl_add_u32 v{VF2}, v7, 3, v4")
    e(f"v_mov_b32 v{VFB}, v4")
    e(f"v_mov_b32 v{VG1}, v7")
    if shift:
        e("v_bfrev_b32 v7, 1")
        e(f"v_cndmask_b32 v{VF4}, v7, v{VF4}, vcc")
        e(f"v_cndmask_b32 v{VF2}, v7, v{VF2}, vcc")


def fimg_store_pair(e, p, so, off, va=None):
    e("s_nop 1")
    e(f"v_permlane16_swap_b32 v{p}, v{p+2}")
    e(f"v_permlane16_swap_b32 v{p+1}, v{p+3}")
    e(f"buffer_store_dwordx4 {vr(p,4)}, v{va if va else VF4}, {SRD(SRD_C)}, {so} offen offset:{off}{SC}")


def fimg_store_one(e, p, so, off):
    e(f"buffer_store_dwordx2 {vr(p,2)}, v{VF2}, {SRD(SRD_C)}, {so} offen offset:{off}{SC}")


def store_rows(e, c, src, sc=SC):
    for it in range(c.NI):
        e(f"s_waitcnt lgkmcnt({c.NI-1-it})")
        so = soff(e, c, it)
        e(f"buffer_store_dwordx4 {vr(src+4*it,4)}, v{VGO}, {SRD(SRD_C)}, {so} offen{sc}")


def t1_consumer(e, t):
    c = t.c
    R = Regs(c, 7)
    SUM, SQ, CS = R.EX, R.EX + 4, R.EX + 8

    def extras(s):
        X, W = R.R[s]
        o = [f"v_mfma_f32_16x16x32_bf16 {vr(SUM,4)}, {vr(R.ONES,4)}, {vr(X,4)}, {vr(SUM,4)}",
             f"v_mfma_f32_16x16x32_bf16 {vr(SQ,4)}, {vr(X,4)}, {vr(X,4)}, {vr(SQ,4)}"]
        for u in range(5):
            o.append(f"v_mfma_f32_16x16x32_bf16 {vr(CS+4*u,4)}, {vr(W+4*u,4)}, {vr(R.ONES,4)}, {vr(CS+4*u,4)}")
        return o

    npk = pack_load(e, [job_small(P_W2, 640, WS_W2I), job_small(P_WO, 640, WS_WOI)], 120, 2)
    clayout_off(e, VXO)
    e(f"s_lshl_b32 s{S_T1}, s{S_CT}, 14")
    e(f"v_lshl_add_u32 v{VPA}, v4, 3, s{S_T1}")
    consumer_main(e, c, R, extras, 28)
    pack_load(e, [job_w3()], 150, 3)
    pack_store(e, npk, 120, 2, wait=3)
    T = R.R[0][0]
    e(f"v_and_b32 v4, 3, v{VJ}")
    e(f"v_cmp_eq_u32 s[{S_M1}:{S_M1+1}], 1, v4")
    e(f"v_cmp_eq_u32 s[{S_M2}:{S_M2+1}], 2, v4")
    e(f"v_cmp_eq_u32 s[{S_M3}:{S_M3+1}], 3, v4")
    e(f"v_lshrrev_b32 v5, 2, v{VJ}")
    e(f"v_cmp_eq_u32 s[{S_M0}:{S_M0+1}], v5, v{VG}")
    gelu_consts(e)
    e(f"v_cndmask_b32 v{SQ}, v{SQ}, v{SQ+1}, s[{S_M1}:{S_M1+1}]")
    e(f"v_cndmask_b32 v{SQ}, v{SQ}, v{SQ+2}, s[{S_M2}:{S_M2+1}]")
    e(f"v_cndmask_b32 v{SQ}, v{SQ}, v{SQ+3}, s[{S_M3}:{S_M3+1}]")
    e(f"v_cndmask_b32 v{SQ}, 0, v{SQ}, s[{S_M0}:{S_M0+1}]")
    xreduce(e, [SQ], T, T + 1)
    ln_from_sums(e, SUM, SQ, SUM + 1, SUM + 2, 4)
    e(f"v_mov_b32 v{SUM+3}, v{SUM+2}")
    D0 = R.R[1][0]
    for tt in range(5):
        ln_gelu_tile(e, R.acc(0, tt), CS + 4 * tt, SUM + 1, SUM + 2, T, D0 + 2 * tt)
        if tt % 2 == 1:
            fimg_store_pair(e, D0 + 2 * tt - 2, "0", (tt - 1) * 512)
    fimg_store_one(e, D0 + 8, "0", 4 * 512)
    lz = e.new("Lz")
    e(f"s_cmp_lg_u32 s{S_WAVE}, 0")
    e(f"s_cbranch_scc1 {lz}")
    e(f"s_cmp_eq_u32 s{S_FNEXT}, 0")
    e(f"s_cselect_b32 s{S_T0}, 1, 0")
    e(f"s_cmp_eq_u32 s{S_FNEXT}, 248")
    e(f"s_cselect_b32 s{S_T0}, 2, s{S_T0}")
    e(f"s_cmp_eq_u32 s{S_T0}, 0")
    e(f"s_cbranch_scc1 {lz}")
    e("v_lshlrev_b32 v4, 8, v1")
    for r in range(4):
        e(f"v_mov_b32 v{T+r}, 0")
    e("s_mov_b64 exec, 0xfffff")
    fo = lambda r, c_: (r >> 4) * 640 * 32 + (r & 15) * 16 + (c_ // 8) * 256
    for (r1, c1), (r2, c2) in (((0, 0), (2047, 160)), ((0, 320), (2046, 480)), ((1, 320), (2047, 480))):
        e(f"s_mov_b32 s{S_T3}, {fo(r2, c2)}")
        e(f"s_cmp_eq_u32 s{S_T0}, 1")
        e(f"s_cselect_b32 s{S_T3}, {fo(r1, c1)}, s{S_T3}")
        e(f"buffer_store_dwordx4 {vr(T,4)}, v4, {SRD(SRD_C)}, s{S_T3} offen{SC}")
    e("s_mov_b64 exec, -1")
    e.label(lz)


def t2_consumer(e, t):
    c = t.c
    R = Regs(c, 0)
    consumer_main(e, c, R, mid=(PUBJ + 2, lambda e: pack_store(e, 3, 150, 3, wait=None)))
    srd(e, SRD_D, P_X, 0, S * 1280)
    for tt in range(5):
        e(f"buffer_load_dwordx2 {vr(VXP+2*tt,2)}, v{VXO}, {SRD(SRD_D)}, 0 offen offset:{tt*32}")
    stage_plain(e, c, R)
    stage_read(e, c, R.ACC)
    store_rows(e, c, R.ACC)


def clayout_off(e, dst):
    e(f"s_lshl_b32 s{S_T0}, s{S_WAVE}, 4")
    e(f"s_add_u32 s{S_T0}, s{S_T0}, s{S_ROW0}")
    e("v_and_b32 v4, 15, v1")
    e(f"v_add_u32 v4, s{S_T0}, v4")
    e("v_lshrrev_b32 v5, 4, v1")
    e(f"s_lshl_b32 s{S_T1}, s{S_COL0}, 1")
    e(f"v_lshl_add_u32 v5, v5, 3, s{S_T1}")
    e(f"s_mov_b32 s{S_T2}, 1280")
    e(f"v_mad_u32_u24 v{dst}, v4, s{S_T2}, v5")


def t3_consumer(e, t):
    c = t.c
    R = Regs(c, 0)
    consumer_main(e, c, R)
    att_preloads(e)
    pack_load(e, [job_small(P_W4, F, WS_W4I)], VPRE, 3)
    T = R.R[0][0]
    D0 = R.R[1][0]
    PS = T + 12
    e(f"v_mov_b32 v{PS}, 0")
    e(f"v_mov_b32 v{PS+1}, 0")
    for tt in range(5):
        a = R.acc(0, tt)
        k = VKX + 2 * tt
        e(f"v_cvt_pk_bf16_f32 v{T+4}, v{a}, v{a+1}")
        e(f"v_cvt_pk_bf16_f32 v{T+5}, v{a+2}, v{a+3}")
        unpack2(e, T, T + 4)
        unpack2(e, T + 2, T + 5)
        unpack2(e, T + 4, VXP + 2 * tt)
        unpack2(e, T + 6, VXP + 2 * tt + 1)
        e(f"v_pk_add_f32 {vr(T,2)}, {vr(T,2)}, {vr(T+4,2)}")
        e(f"v_pk_add_f32 {vr(T+2,2)}, {vr(T+2,2)}, {vr(T+6,2)}")
        e(f"v_cvt_pk_bf16_f32 v{k}, v{T}, v{T+1}")
        e(f"v_cvt_pk_bf16_f32 v{k+1}, v{T+2}, v{T+3}")
        e(f"v_mov_b32 v{D0+2*tt}, v{k}")
        e(f"v_mov_b32 v{D0+2*tt+1}, v{k+1}")
        if tt % 2 == 1:
            fimg_store_pair(e, D0 + 2 * tt - 2, "0", (tt - 1) * 512)
        unpack2(e, T, k)
        unpack2(e, T + 2, k + 1)
        for r in range(4):
            e(f"v_add_f32 v{PS}, v{PS}, v{T+r}")
            e(f"v_fmac_f32 v{PS+1}, v{T+r}, v{T+r}")
    fimg_store_one(e, D0 + 8, "0", 4 * 512)
    xreduce(e, [PS, PS + 1], T, T + 1)
    e("s_mov_b64 exec, 0xffff")
    e(f"buffer_store_dwordx2 {vr(PS,2)}, v{VPA}, {SRD(SRD_F)}, 0 offen{SC}")
    e("s_mov_b64 exec, -1")


def t5_consumer(e, t):
    c = t.c
    R = Regs(c, 2)
    CS, PR = R.EX, VPRE

    def extras(s):
        X, W = R.R[s]
        return [f"v_mfma_f32_16x16x32_bf16 {vr(CS+4*u,4)}, {vr(W+4*u,4)}, {vr(R.ONES,4)}, {vr(CS+4*u,4)}" for u in range(2)]

    def post(e):
        e(f"s_lshl_b32 s{S_T2}, s{S_WAVE}, 5")
        e(f"s_add_u32 s{S_T2}, s{S_T2}, s{S_ROW0}")
        e(f"v_add_u32 v4, s{S_T2}, v{VJ}")
        e("v_lshlrev_b32 v4, 3, v4")
        e(f"v_lshl_add_u32 v4, v{VG}, 15, v4")
        e(f"s_mov_b32 s{S_T2}, 16384")
        for i in range(2):
            e(f"buffer_load_dwordx2 {vr(PR+4*i,2)}, v4, {SRD(SRD_F)}, 0 offen offset:{i*128}{SC}")
            e(f"buffer_load_dwordx2 {vr(PR+4*i+2,2)}, v4, {SRD(SRD_F)}, s{S_T2} offen offset:{i*128}{SC}")

    consumer_main(e, c, R, extras, 8, mid=(PUBJ + 1, post))
    T = R.R[0][0]
    CSR = R.R[1][0]
    e(f"v_cmp_eq_u32 s[{S_M0}:{S_M0+1}], 0, v{VJ}")
    for u in range(2):
        gtile(e, c, u, S_T2)
        e(f"s_lshl_b32 s{S_T2}, s{S_T2}, 6")
        e(f"s_add_u32 s{S_T2}, s{S_T2}, {c.STG}")
        e(f"v_lshl_add_u32 v{4+u}, v{VG}, 4, s{S_T2}")
    e(f"s_mov_b64 exec, s[{S_M0}:{S_M0+1}]")
    for u in range(2):
        e(f"ds_write_b128 v{4+u}, {vr(CS+4*u,4)}")
    e("s_mov_b64 exec, -1")
    e("s_waitcnt lgkmcnt(0)")
    e("s_barrier")
    for tt in range(c.nt):
        gtile(e, c, tt, S_T2)
        e(f"s_lshl_b32 s{S_T2}, s{S_T2}, 6")
        e(f"s_add_u32 s{S_T2}, s{S_T2}, {c.STG}")
        e(f"v_lshl_add_u32 v4, v{VG}, 4, s{S_T2}")
        e(f"ds_read_b128 {vr(CSR+4*tt,4)}, v4")
    gelu_consts(e)
    e("s_waitcnt vmcnt(0)")
    for i in range(2):
        e(f"v_add_f32 v{PR+4*i}, v{PR+4*i}, v{PR+4*i+2}")
        e(f"v_add_f32 v{PR+4*i+1}, v{PR+4*i+1}, v{PR+4*i+3}")
    xreduce(e, [PR, PR + 1, PR + 4, PR + 5], T, T + 1)
    for i in range(2):
        ln_from_sums(e, PR + 4 * i, PR + 4 * i + 1, PR + 8 + i, PR + 4 * i + 2, 4)
        e(f"v_mov_b32 v{PR+4*i+3}, v{PR+4*i+2}")
    e("s_waitcnt lgkmcnt(0)")
    k = 0
    for tp in range(0, 7, 2):
        gtile(e, c, tp, S_T0)
        e(f"s_lshl_b32 s{S_T0}, s{S_T0}, 9")
        if tp < 6:
            gtile(e, c, tp + 1, S_T1)
            e(f"s_lshl_b32 s{S_T1}, s{S_T1}, 9")
            e(f"s_sub_u32 s{S_T1}, s{S_T1}, s{S_T0}")
            e(f"v_mad_i32_i24 v{VF4}, v{VG1}, s{S_T1}, v{VFB}")
            e(f"v_add_u32 v{VF4}, s{S_T0}, v{VF4}")
            e(f"s_mov_b32 s{S_T0}, 0")
        e(f"s_add_u32 s{S_T1}, s{S_T0}, {F*32}")
        for i in range(2):
            p = T + 8 + 4 * (k % 4); k += 1
            ln_gelu_tile(e, R.acc(i, tp), CSR + 4 * tp, PR + 8 + i, PR + 4 * i + 2, T, p)
            so = f"s{S_T1}" if i else f"s{S_T0}"
            if tp < 6:
                ln_gelu_tile(e, R.acc(i, tp + 1), CSR + 4 * (tp + 1), PR + 8 + i, PR + 4 * i + 2, T, p + 2)
                fimg_store_pair(e, p, so, 0)
            else:
                fimg_store_one(e, p, so, 0)


def t6_consumer(e, t):
    c = t.c
    R = Regs(c, 0)

    def post(e):
        e(f"v_lshlrev_b32 v4, 2, v{VJ}")
        e(f"s_lshl_b32 s{S_T0}, s{S_WAVE}, 4")
        e(f"s_add_u32 s{S_T0}, s{S_T0}, s{S_ROW0}")
        e(f"s_lshl_b32 s{S_T0}, s{S_T0}, 2")
        e(f"buffer_load_dword v{VGT}, v4, {SRD(SRD_F)}, s{S_T0} offen{SC}")

    consumer_main(e, c, R, mid=(PUBJ + 1, post))
    for tt in range(5):
        a = R.acc(0, tt)
        e(f"v_cvt_pk_bf16_f32 v{VKA+2*tt}, v{a}, v{a+1}")
        e(f"v_cvt_pk_bf16_f32 v{VKA+2*tt+1}, v{a+2}, v{a+3}")


def t7_consumer(e, t):
    c = t.c
    R = Regs(c, 0)
    consumer_main(e, c, R)
    T = R.R[0][0]
    OMG, G2 = T + 12, T + 14
    e("s_waitcnt vmcnt(0)")
    e(f"v_sub_f32 v{OMG}, 1.0, v{VGT}")
    bf16r(e, OMG, OMG)
    e(f"v_mov_b32 v{OMG+1}, v{OMG}")
    e(f"v_mov_b32 v{G2}, v{VGT}")
    e(f"v_mov_b32 v{G2+1}, v{VGT}")

    def rnd4(a):
        e(f"v_cvt_pk_bf16_f32 v{T+8}, v{a}, v{a+1}")
        e(f"v_cvt_pk_bf16_f32 v{T+9}, v{a+2}, v{a+3}")
        unpack2(e, a, T + 8)
        unpack2(e, a + 2, T + 9)

    def pk(op, d, a, b, bs=2):
        e(f"{op} {vr(d,2)}, {vr(a,2)}, {vr(b,2)}")
        e(f"{op} {vr(d+2,2)}, {vr(a+2,2)}, {vr(b+bs,2)}")

    for tt in range(5):
        a = R.acc(0, tt)
        p = T + 16 + 2 * (tt % 4)
        rnd4(a)
        unpack2(e, T, VKX + 2 * tt)
        unpack2(e, T + 2, VKX + 2 * tt + 1)
        pk("v_pk_add_f32", a, a, T)
        rnd4(a)
        pk("v_pk_mul_f32", a, a, OMG, 0)
        rnd4(a)
        unpack2(e, T, VKA + 2 * tt)
        unpack2(e, T + 2, VKA + 2 * tt + 1)
        pk("v_pk_mul_f32", T, T, G2, 0)
        rnd4(T)
        pk("v_pk_add_f32", a, a, T)
        e(f"v_cvt_pk_bf16_f32 v{p}, v{a}, v{a+1}")
        e(f"v_cvt_pk_bf16_f32 v{p+1}, v{a+2}, v{a+3}")
        stage_write(e, c, 0, tt, p)
    D0 = R.R[1][0]
    stage_read(e, c, D0)
    store_rows(e, c, D0, "")


ATT_N = 83


def att_decode(e):
    decode_small(e)
    e(f"s_lshl_b32 s{S_T0}, s{S_CT}, 3")
    e(f"s_add_u32 s{S_ROW0}, s{S_ROW0}, s{S_T0}")
    e(f"s_add_u32 s{S_FNEXT}, s{S_FNEXT}, 768")


def deps_a(e):
    e(f"s_sub_u32 s{S_T0}, s{S_ROW0}, 14")
    e(f"s_max_i32 s{S_T0}, s{S_T0}, 0")
    e(f"s_lshr_b32 s{S_T0}, s{S_T0}, 7")
    e(f"s_lshr_b32 s{S_T1}, s{S_ROW0}, 7")
    e(f"s_sub_u32 s{S_T1}, s{S_T1}, s{S_T0}")
    e("v_bfe_u32 v4, v1, 4, 1")
    e(f"v_mul_u32_u24 v4, s{S_T1}, v4")
    e(f"v_add_u32 v4, s{S_T0}, v4")
    e("v_and_b32 v5, 15, v1")
    e("v_lshl_add_u32 v4, v4, 4, v5")
    e("v_add_u32 v4, 0x100, v4")


def att_loader_setup(e):
    e(f"s_sub_u32 s{S_T0}, s{S_ROW0}, 14")
    e(f"s_mul_i32 s{S_T0}, s{S_T0}, 3840")
    e(f"s_lshl_b32 s{S_MA}, s{S_WL}, 10")
    e(f"s_add_u32 s{S_T0}, s{S_T0}, s{S_MA}")
    e(f"v_lshl_add_u32 v{LVA}, v1, 4, s{S_T0}")
    e(f"v_bfrev_b32 v{LVA+1}, 1")
    srd(e, SRD_A, P_WS, WS_QKV, S * 3840)


def att_issue(e, k):
    lp = e.new("Lai")
    e(f"s_mov_b32 s{S_CNT}, {k}")
    e.label(lp)
    e(f"v_cmp_gt_i32 vcc, 0, v{LVA}")
    e(f"s_mov_b32 m0, s{S_MA}")
    e(f"s_add_u32 s{S_MA}, s{S_MA}, 0x1000")
    e(f"v_cndmask_b32 v3, v{LVA}, v{LVA+1}, vcc")
    e(f"buffer_load_dwordx4 v3, {SRD(SRD_A)}, 0 offen{SC} lds")
    e(f"v_add_u32 v{LVA}, 0x1000, v{LVA}")
    e(f"s_sub_u32 s{S_CNT}, s{S_CNT}, 1")
    e(f"s_cmp_lg_u32 s{S_CNT}, 0")
    e(f"s_cbranch_scc1 {lp}")


GX, GWR = 150, 160


def att_preloads(e):
    srd(e, SRD_E, P_GW, 0, 1280)
    e(f"s_lshl_b32 s{S_T0}, s{S_CT}, 3")
    e(f"s_add_u32 s{S_T0}, s{S_T0}, s{S_ROW0}")
    e("v_lshrrev_b32 v4, 5, v0")
    e("v_and_b32 v5, 31, v0")
    e("v_mul_u32_u24 v6, 40, v5")
    e(f"v_add_u32 v4, s{S_T0}, v4")
    e(f"s_mov_b32 s{S_T2}, 1280")
    e(f"v_mad_u32_u24 v5, v4, s{S_T2}, v6")
    e(f"buffer_load_dwordx4 {vr(GX,4)}, v5, {SRD(SRD_D)}, 0 offen")
    e(f"buffer_load_dwordx4 {vr(GX+4,4)}, v5, {SRD(SRD_D)}, 0 offen offset:16")
    e(f"buffer_load_dwordx2 {vr(GX+8,2)}, v5, {SRD(SRD_D)}, 0 offen offset:32")
    e(f"buffer_load_dwordx4 {vr(GWR,4)}, v6, {SRD(SRD_E)}, 0 offen")
    e(f"buffer_load_dwordx4 {vr(GWR+4,4)}, v6, {SRD(SRD_E)}, 0 offen offset:16")
    e(f"buffer_load_dwordx2 {vr(GWR+8,2)}, v6, {SRD(SRD_E)}, 0 offen offset:32")


def attention(e):
    stamp(e, 0)
    e("s_barrier")
    att_decode(e)
    srd(e, SRD_C, P_WS, WS_O, S * 1280)
    srd(e, SRD_F, P_WS, WS_G, S * 4)
    e("v_lshrrev_b32 v4, 5, v0")
    e("v_and_b32 v14, 31, v0")
    e("v_mul_u32_u24 v6, 40, v14")
    e("v_mul_u32_u24 v8, 3840, v4")
    e("v_add_u32 v8, v8, v6")
    e(f"v_add_u32 v9, s{S_ROW0}, v4")
    stamp(e, 1)
    e("s_waitcnt vmcnt(7)")
    e("s_barrier")
    stamp(e, 2)
    Q, KK, LG = 16, 32, 112
    for d in range(5):
        e(f"ds_read_b64 {vr(Q+2*d,2)}, v8 offset:{14*3840 + 8*d}")
    for d in range(10):
        e(f"ds_read_b64 {vr(KK+2*d,2)}, v8 offset:{(14-2*(d//5))*3840 + 1280 + 8*(d%5)}")
    GS = 170
    e(f"v_mov_b32 v{GS}, 0")
    for d in range(10):
        unpack2(e, GS + 1, GX + d)
        unpack2(e, GS + 3, GWR + d)
        e(f"v_mul_f32 v{GS+1}, v{GS+1}, v{GS+3}")
        e(f"v_mul_f32 v{GS+2}, v{GS+2}, v{GS+4}")
        e(f"v_cvt_pk_bf16_f32 v{GS+1}, v{GS+1}, v{GS+2}")
        unpack2(e, GS + 2, GS + 1)
        e(f"v_add_f32 v{GS}, v{GS}, v{GS+2}")
        e(f"v_add_f32 v{GS}, v{GS}, v{GS+3}")
    for sh in (8, 4, 2, 1):
        e("s_nop 1")
        e(f"v_add_f32_dpp v{GS}, v{GS}, v{GS} row_ror:{sh} row_mask:0xf bank_mask:0xf")
    e(f"v_mov_b32 v{GS+1}, v{GS}")
    e(f"v_mov_b32 v{GS+2}, v{GS}")
    e("s_nop 1")
    e(f"v_permlane16_swap_b32 v{GS+1}, v{GS+2}")
    e("s_nop 0")
    e(f"v_add_f32 v{GS}, v{GS+1}, v{GS+2}")
    bf16r(e, GS, GS)
    e(f"v_mul_f32 v{GS}, {hex(f32bits(-1.4426950408889634))}, v{GS}")
    e(f"v_exp_f32 v{GS}, v{GS}")
    e("s_nop 0")
    e(f"v_add_f32 v{GS}, 1.0, v{GS}")
    e(f"v_rcp_f32 v{GS}, v{GS}")
    e("s_nop 0")
    bf16r(e, GS, GS)
    for w in range(8):
        if w % 2 == 0:
            e("s_waitcnt lgkmcnt(0)")
            if w < 6:
                for d in range(10):
                    ww = w + 2 + d // 5
                    e(f"ds_read_b64 {vr(KK+10*ww+2*(d%5),2)}, v8 offset:{(14-2*ww)*3840 + 1280 + 8*(d%5)}")
        e(f"v_mov_b32 v{LG+w}, 0")
        for d in range(10):
            e(f"v_dot2_f32_bf16 v{LG+w}, v{Q+d}, v{KK+10*w+d}, v{LG+w}")
    e.nop(4)
    vreads = []
    for w in range(8):
        for d in range(5):
            vreads.append(f"ds_read_b64 {vr(KK+10*w+2*d,2)}, v8 offset:{(14-2*w)*3840 + 2560 + 8*d}")
    for r in vreads[:15]:
        e(r)
    e(f"s_mov_b32 s{S_K0}, {hex(f32bits(20 ** -0.5))}")
    e(f"v_mov_b32 v10, {hex(f32bits(-1e9) & 0xffff0000)}")
    for w in range(8):
        bf16r(e, LG + w, LG + w)
        e(f"v_mul_f32 v{LG+w}, s{S_K0}, v{LG+w}")
        bf16r(e, LG + w, LG + w)
        if w:
            e(f"v_cmp_gt_u32 vcc, {2*w}, v9")
            e("s_nop 1")
            e(f"v_cndmask_b32 v{LG+w}, v{LG+w}, v10, vcc")
    e(f"v_max3_f32 v11, v{LG}, v{LG+1}, v{LG+2}")
    e(f"v_max3_f32 v11, v11, v{LG+3}, v{LG+4}")
    e(f"v_max3_f32 v11, v11, v{LG+5}, v{LG+6}")
    e(f"v_max_f32 v11, v11, v{LG+7}")
    e(f"s_mov_b32 s{S_K1}, {hex(f32bits(1.4426950408889634))}")
    for w in range(8):
        e(f"v_sub_f32 v{LG+w}, v{LG+w}, v11")
        e(f"v_mul_f32 v{LG+w}, s{S_K1}, v{LG+w}")
        e(f"v_exp_f32 v{LG+w}, v{LG+w}")
    e("s_waitcnt lgkmcnt(0)")
    for r in vreads[15:30]:
        e(r)
    e(f"v_add_f32 v12, v{LG}, v{LG+1}")
    for w in range(2, 8):
        e(f"v_add_f32 v12, v12, v{LG+w}")
    e("v_rcp_f32 v12, v12")
    e("s_nop 0")
    for w in range(8):
        e(f"v_mul_f32 v{LG+w}, v{LG+w}, v12")
    PP = 120
    for w in range(4):
        e(f"v_cvt_pk_bf16_f32 v{PP+w}, v{LG+2*w}, v{LG+2*w+1}")
    e("s_waitcnt lgkmcnt(0)")
    for r in vreads[30:]:
        e(r)
    e("s_waitcnt vmcnt(0)")
    e("s_barrier")
    e(f"s_mov_b32 s{S_K2}, 0x05040100")
    e(f"s_mov_b32 s{S_K3}, 0x07060302")
    O = 124
    for r in range(20):
        e(f"v_mov_b32 v{O+r}, 0")
    for wp in range(4):
        if wp == 3:
            e("s_waitcnt lgkmcnt(0)")
            stamp(e, 3)
        a, b = KK + 10 * (2 * wp), KK + 10 * (2 * wp + 1)
        for d in range(10):
            e(f"v_perm_b32 v{Q+(d%2)*2}, v{b+d}, v{a+d}, s{S_K2}")
            e(f"v_perm_b32 v{Q+(d%2)*2+1}, v{b+d}, v{a+d}, s{S_K3}")
            e(f"v_dot2_f32_bf16 v{O+2*d}, v{Q+(d%2)*2}, v{PP+wp}, v{O+2*d}")
            e(f"v_dot2_f32_bf16 v{O+2*d+1}, v{Q+(d%2)*2+1}, v{PP+wp}, v{O+2*d+1}")
    e.nop(4)
    for d in range(10):
        e(f"v_cvt_pk_bf16_f32 v{KK+d}, v{O+2*d}, v{O+2*d+1}")
    e("v_lshrrev_b32 v4, 5, v0")
    e("v_mul_u32_u24 v4, 1296, v4")
    e(f"v_add3_u32 v4, v4, v6, {0}")
    e(f"v_add_u32 v4, {84*1024}, v4")
    for d in range(5):
        e(f"ds_write_b64 v4, {vr(KK+2*d,2)} offset:{8*d}")
    e("v_and_b32 v6, 7, v0")
    e("v_lshrrev_b32 v7, 3, v0")
    e("v_mul_u32_u24 v5, 1296, v6")
    e("v_lshl_add_u32 v5, v7, 4, v5")
    e(f"v_add_u32 v5, {84*1024}, v5")
    e("v_lshlrev_b32 v6, 4, v6")
    e("v_lshl_add_u32 v6, v7, 8, v6")
    e(f"s_lshr_b32 s{S_T2}, s{S_ROW0}, 4")
    e(f"s_mul_i32 s{S_T2}, s{S_T2}, 20480")
    e(f"s_and_b32 s{S_T1}, s{S_ROW0}, 15")
    e(f"s_lshl_b32 s{S_T1}, s{S_T1}, 4")
    e(f"s_add_u32 s{S_T1}, s{S_T1}, s{S_T2}")
    e("s_waitcnt lgkmcnt(0)")
    e("s_barrier")
    for i in range(3):
        e(f"ds_read_b128 {vr(Q+4*i,4)}, v5 offset:{512*i}")
    lsk = e.new("Lsk")
    for i in range(3):
        e(f"s_waitcnt lgkmcnt({2-i})")
        if i == 2:
            e(f"s_cmp_ge_u32 s{S_WAVE}, 2")
            e(f"s_cbranch_scc1 {lsk}")
        e(f"buffer_store_dwordx4 {vr(Q+4*i,4)}, v6, {SRD(SRD_C)}, s{S_T1} offen{SC}")
        e(f"s_add_u32 s{S_T1}, s{S_T1}, 8192")
    e.label(lsk)
    pack_store(e, 3, VPRE, 3, wait=None)
    e(f"v_lshlrev_b32 v{GS+1}, 2, v9")
    e("v_cmp_eq_u32 vcc, 0, v14")
    e("s_nop 1")
    e("s_mov_b64 exec, vcc")
    e(f"buffer_store_dword v{GS}, v{GS+1}, {SRD(SRD_F)}, 0 offen{SC}")
    e("s_mov_b64 exec, -1")
    stamp(e, 4)
    stamp_flush(e, 5)


def main():
    e = E()
    T = build_tasks()
    name = NAME + "_kernel"
    e.L += [f".globl {name}", ".p2align 8", f".type {name},@function"]
    e.label(name)
    e("s_cmp_ge_u32 s2, 256")
    e("s_cbranch_scc1 Lend")
    e("s_load_dwordx16 s[16:31], s[0:1], 0")
    e("s_load_dwordx8 s[32:39], s[0:1], 64")
    e("v_lshrrev_b32 v1, 6, v0")
    e(f"s_and_b32 s{S_XCD}, s2, 7")
    e(f"v_readfirstlane_b32 s{S_WAVE}, v1")
    e(f"s_lshr_b32 s{S_SLOT}, s2, 3")
    e("v_and_b32 v1, 63, v0")
    e(f"s_sub_u32 s{S_WL}, s{S_WAVE}, 4")
    l = e.new("Ltg")
    e("s_cmp_lg_u32 s2, 0")
    e(f"s_cbranch_scc1 {l}")
    e(f"s_cmp_lg_u32 s{S_WAVE}, 3")
    e(f"s_cbranch_scc1 {l}")
    e("s_memrealtime s[4:5]")
    e("s_waitcnt lgkmcnt(0)")
    srd(e, SRD_P, P_DBG, 0, 256)
    e("s_or_b32 s4, s4, 1")
    e("v_mov_b32 v4, 0")
    e("v_mov_b32 v6, s4")
    e("v_mov_b32 v7, s5")
    e("s_mov_b64 exec, 1")
    e(f"buffer_store_dwordx2 v[6:7], v4, {SRD(SRD_P)}, 0 offen sc1")
    e("s_mov_b64 exec, -1")
    e.label(l)
    e(f"s_cmp_ge_u32 s{S_WAVE}, 4")
    e("s_cbranch_scc1 Lcold_L1")

    order = [1, 2, 3, 5, 6, 7]
    cons = {1: t1_consumer, 2: t2_consumer, 3: t3_consumer, 5: t5_consumer, 6: t6_consumer, 7: t7_consumer}
    pub_in = {2, 3, 5, 6}

    for k in order:
        t = T[k]
        TASK[0] = k - 1
        stamp(e, 0)
        t.decode(e)
        if k == 1:
            e("s_waitcnt lgkmcnt(0)")
        t.srd_c(e)
        if k in (2, 7):
            store_addrs(e, t.c, False)
        elif k != 6:
            fimg_addrs(e, t.c, F if k == 5 else 640, k == 1)
        PUB[0] = k in pub_in
        cons[k](e, t)
        stamp(e, 4)
        stamp_flush(e, 5)
        if k == 7:
            e("s_endpgm")
        if k == 3:
            TASK[0] = 3
            attention(e)
    e.label("Lcold_L1")
    t = T[1]
    t.decode(e)
    loader_setup(e, t.c)
    e("s_waitcnt lgkmcnt(0)")
    t.srd_ab(e)
    issue_n(e, t.c, t.asc, t.c.P)
    E_ = t.c.P

    def rot_flags(e):
        e(f"s_mov_b32 s{S_FPREV}, s{S_FIDX}")
        e(f"s_mov_b32 s{S_FIDX}, s{S_FNEXT}")

    for idx, k in enumerate(order):
        t = T[k]
        nk = order[idx + 1] if idx + 1 < len(order) else None
        rot_flags(e)
        busy = [t.c.LAST, (t.c.STG, t.c.STGEND)]
        if k == 3:
            def hook(e):
                att_decode(e)
                att_loader_setup(e)
                poll_issue(e, deps_a)
                return 1
            loader_main(e, t.c, t.asc, E_, True, hook)
            poll_check(e)
            att_issue(e, 20)
            e("s_barrier")
            att_issue(e, 1)
            rot_flags(e)
            n_t = T[5]
            n_t.decode(e)
            loader_setup(e, n_t.c)
            n_t.srd_ab(e)
            e("s_waitcnt vmcnt(0)")
            e("s_barrier")
            e("s_barrier")
            store_flag(e)
            poll_issue(e, n_t.deps)
            poll_check(e)
            E_ = n_early([(0, 96 * 1024)], n_t.c)
            touch_task(e, n_t)
            issue_n(e, n_t.c, n_t.asc, E_)
            e("s_barrier")
            continue
        hook = None
        if nk:
            n_t = T[nk]

            def hook(e, n_t=n_t):
                n_t.decode(e)
                loader_setup(e, n_t.c)
                n_t.srd_ab(e)
                if n_t.deps:
                    poll_issue(e, n_t.deps)
                    return 1
                return 0
        loader_main(e, t.c, t.asc, E_, k in pub_in, hook)
        if not nk:
            e("s_endpgm")
            continue
        if k == 5:
            e("s_barrier")
        if n_t.deps:
            poll_check(e)
        E_ = n_early(busy, n_t.c)
        touch_task(e, n_t)
        issue_n(e, n_t.c, n_t.asc, E_)
        if k == 1:
            fetch_tag(e)
    e.label("Lend")
    e("s_endpgm")

    head = open("cdna_kernels/" + NAME + ".s.ref").read().split("; Override launch")[0]
    out = head
    out += f"; WS qkv {WS_QKV} 2048 1920\n"
    out += "; @launch grid=(256,1,1) block=(512,1,1) lds=163840\n"
    out += '.amdgcn_target "amdgcn-amd-amdhsa--gfx950"\n.text\n'
    out += "\n".join(e.L) + "\n"
    out += '.section .rodata,"a"\n'
    out += f""".p2align 6
.amdhsa_kernel {name}
  .amdhsa_next_free_vgpr {NVGPR}
  .amdhsa_next_free_sgpr 102
  .amdhsa_accum_offset 256
  .amdhsa_group_segment_fixed_size 0
  .amdhsa_kernarg_size 96
  .amdhsa_user_sgpr_count 2
  .amdhsa_user_sgpr_kernarg_segment_ptr 1
  .amdhsa_system_sgpr_workgroup_id_x 1
.end_amdhsa_kernel
"""
    path = sys.argv[1] if len(sys.argv) > 1 else "cdna_kernels/" + NAME + ".s"
    open(path, "w").write(out)
    print("wrote", path, len(e.L), "lines")


main()
```

```python
import sys, struct, os
OPT = set(os.environ.get('OPT', '').split(','))

NAME = "gated_mix__sliding_local_dilated__mixer_s_mlp__prompt"
S, D, F = 2048, 640, 1728

WS_QKV = 0
WS_HS = 0x800000 + 0x1000
WS_O = 0xB00000
WS_X1 = 0xE00000
WS_H3 = 0x1400000
WS_PART = 0x1C00000
WS_G = 0x1D00000
WS_FLAG = 0x1E00000
WS_STAMP = 0x1F00000
WS_W2I = 0x2000000
WS_WOI = 0x2100000
WS_W3I = 0x2200000
WS_W4I = 0x2500000
NFLAG = 10 * 256
SC = " sc1"


def f32bits(x):
    return struct.unpack("<I", struct.pack("<f", x))[0]


class E:
    def __init__(self):
        self.L = []
        self.n = 0

    def __call__(self, s):
        self.L.append("    " + s)

    def label(self, l):
        self.L.append(l + ":")

    def new(self, p="L"):
        self.n += 1
        return f"{p}_{self.n}"

    def nop(self, n):
        while n > 0:
            k = min(n, 16)
            self(f"s_nop {k-1}")
            n -= k

    def c(self, s):
        self.L.append("    ; " + s)


def vr(a, n=1):
    return f"v{a}" if n == 1 else f"v[{a}:{a+n-1}]"


P_X, P_WQKV, P_WO, P_BX, P_W1, P_W2, P_W3, P_W4 = 16, 18, 20, 22, 24, 26, 28, 30
P_GW, P_OUT, P_DBG, P_WS = 32, 34, 36, 38
SRD_A, SRD_B, SRD_C, SRD_D, SRD_E, SRD_F = 40, 44, 48, 52, 56, 60
S_ROW0, S_COL0, S_WAVE, S_KA, S_KB, S_BUF, S_CNT = 64, 65, 66, 67, 68, 69, 70
S_T0, S_T1, S_T2, S_T3 = 71, 72, 73, 74
S_MA, S_MB, S_RB, S_CT, S_WL = 75, 76, 77, 78, 79
S_M0, S_M1, S_M2, S_M3 = 80, 82, 84, 86
S_K0, S_K1, S_K2, S_K3 = 88, 89, 90, 91
SRD_P = 92
S_XCD, S_SLOT = 96, 97
S_TAG = 98
S_FIDX, S_FNEXT, S_FPREV = 15, 14, 7
SRD = lambda d: f"s[{d}:{d+3}]"

VJ, VG = 2, 3
VA0, VA1 = 8, 9
VSTG, VK0 = 12, 13
LVA, LVB = 176, 184
VPRE = 176
VKX, VKA, VGT = 200, 210, 220
VXP = 222
VPA = 221
VXO = 199
VL, VGO = 232, 233
VBT = 244
NVGPR = 253
TASK = [0]
PUB = [False]


def srd(e, d, ptr, off, nbytes):
    if off:
        e(f"s_add_u32 s{d}, s{ptr}, {off}")
        e(f"s_addc_u32 s{d+1}, s{ptr+1}, 0")
    else:
        e(f"s_mov_b32 s{d}, s{ptr}")
        e(f"s_mov_b32 s{d+1}, s{ptr+1}")
    e(f"s_mov_b32 s{d+2}, {nbytes}")
    e(f"s_mov_b32 s{d+3}, 0x00020000")


def stamp(e, idx):
    if 'stamp' not in OPT: return
    e("s_memtime s[100:101]")
    e("s_waitcnt lgkmcnt(0)")
    e(f"s_mov_b32 s{8+idx}, s100")


def stamp_flush(e, n, wave=0):
    if 'stamp' not in OPT: return
    stamp(e, n)
    l = e.new("Lst")
    e(f"s_cmp_lg_u32 s{S_WAVE}, {wave}")
    e(f"s_cbranch_scc1 {l}")
    srd(e, SRD_P, P_WS, WS_STAMP, 256 * 256)
    e("s_lshl_b32 s100, s2, 8")
    e("s_mov_b64 exec, 1")
    e("v_mov_b32 v4, s100")
    for i in range(n + 1):
        e(f"v_mov_b32 v5, s{8+i}")
        e(f"buffer_store_dword v5, v4, {SRD(SRD_P)}, 0 offen offset:{32*TASK[0] + 4*i}")
    e("s_mov_b64 exec, -1")
    e.label(l)


class Cfg:
    def __init__(self, Tm, Tn, K, SB, NBUF, WM, WN, lda, ldb, ldc, STGBASE, s0=0, packed=False, fimg=False, rot=0):
        self.s0 = s0
        self.fimg = fimg
        self.rot = rot
        self.packed = packed
        self.PSB = Tn * 2
        self.BSTEP = 64 * self.PSB
        self.Tm, self.Tn, self.K, self.SB, self.NBUF, self.WM, self.WN = Tm, Tn, K, SB, NBUF, WM, WN
        self.WK = 1
        assert WM * WN == 4
        self.swz = {320: [(3, 0)], 192: [(3, 0)], 384: [(1, 0), (3, 1)], 256: [(0, 0), (1, 1), (3, 2)]}[SB]
        self.lda, self.ldb, self.ldc = lda, ldb, ldc
        self.NS = K // 64
        self.NT = Tn // 16
        self.mt = Tm // 16 // WM
        self.nt = self.NT // WN
        self.ABYTES = Tm * 128
        self.BUFSZ = self.ABYTES + 64 * SB
        self.nAw = Tm // 8 // 4
        self.nBw = SB // 16 // 4
        self.n = self.nAw + self.nBw
        self.CPR = SB // 16
        self.P = NBUF - 1
        assert NBUF * self.BUFSZ <= 163840
        self.RS = self.nt * 32 + 16
        self.CPO = self.nt * 2
        self.LPR = 8 if self.CPO <= 8 else 16
        self.RPI = 64 // self.LPR
        self.RW = self.mt * 16
        self.NI = self.RW // self.RPI
        self.WSTG = self.RW * self.RS
        self.STG = STGBASE
        self.STGEND = STGBASE + 4 * self.WSTG
        assert self.STGEND <= 163840
        last = (s0 + self.NS - 1) % NBUF
        self.LAST = (last * self.BUFSZ, (last + 1) * self.BUFSZ)
        assert self.STGEND <= self.LAST[0] or self.STG >= self.LAST[1]


def overlaps(a, b):
    return a[0] < b[1] and b[0] < a[1]


def n_early(busy, nxt):
    early = 0
    for j in range(nxt.P):
        jj = (nxt.s0 + j) % nxt.NBUF
        sl = (jj * nxt.BUFSZ, (jj + 1) * nxt.BUFSZ)
        if any(overlaps(sl, b) for b in busy):
            break
        early += 1
    return early


def bf16r(e, d, s):
    e(f"v_cvt_pk_bf16_f32 v{d}, v{s}, v{s}")
    e(f"v_lshlrev_b32 v{d}, 16, v{d}")


def unpack2(e, d, s):
    e(f"v_lshlrev_b32 v{d}, 16, v{s}")
    e(f"v_and_b32 v{d+1}, 0xffff0000, v{s}")


def store_addrs(e, c, shift=False):
    wmwn(e, c)
    sh = 3 if c.LPR == 8 else 4
    e(f"s_mul_i32 s{S_T2}, s{S_T0}, {c.RW}")
    e(f"s_add_u32 s{S_T2}, s{S_T2}, s{S_ROW0}")
    e(f"s_mul_i32 s{S_T2}, s{S_T2}, {c.ldc}")
    e(f"s_mul_i32 s{S_T3}, s{S_T1}, {c.nt*16}")
    e(f"s_add_u32 s{S_T3}, s{S_T3}, s{S_COL0}")
    e(f"s_lshl_b32 s{S_T1}, s{S_T3}, 1")
    e(f"s_add_u32 s{S_T2}, s{S_T2}, s{S_T1}")
    e(f"s_mul_i32 s{S_T0}, s{S_WAVE}, {c.WSTG}")
    e(f"s_add_u32 s{S_T0}, s{S_T0}, {c.STG}")
    e(f"s_mov_b32 s{S_T1}, {c.ldc}")
    e(f"v_lshrrev_b32 v5, {sh}, v1")
    e(f"v_and_b32 v6, {c.LPR-1}, v1")
    e(f"v_mul_u32_u24 v7, {c.RS}, v5")
    e("v_lshl_add_u32 v7, v6, 4, v7")
    e(f"v_add_u32 v{VL}, s{S_T0}, v7")
    if shift:
        e(f"s_mov_b32 s{S_K2}, 0x0413")
        e(f"v_lshl_add_u32 v7, v6, 3, s{S_T3}")
        e("v_mul_u32_u24 v7, 410, v7")
        e("v_lshrrev_b32 v7, 16, v7")
        e("v_lshlrev_b32 v7, 2, v7")
        e(f"v_bfe_u32 v7, s{S_K2}, v7, 4")
        e("v_add_u32 v5, v5, v7")
    if c.CPO < c.LPR:
        e(f"v_cmp_gt_u32 vcc, {c.CPO}, v6")
    e("v_lshlrev_b32 v6, 4, v6")
    e(f"v_mad_u32_u24 v7, v5, s{S_T1}, v6")
    e(f"v_add_u32 v{VGO}, s{S_T2}, v7")
    if c.CPO < c.LPR:
        e("v_bfrev_b32 v7, 1")
        e(f"v_cndmask_b32 v{VGO}, v7, v{VGO}, vcc")


def soff(e, c, it):
    if it == 0:
        return "0"
    e(f"s_mov_b32 s{S_K0}, {it*c.RPI*c.ldc}")
    return f"s{S_K0}"


def poll(e, addr_fn):
    addr_fn(e)
    e("v_lshlrev_b32 v4, 3, v4")
    srd(e, SRD_P, P_WS, WS_FLAG, NFLAG * 8)
    lp, l = e.new("Lpoll"), e.new("Lpx")
    e(f"s_mov_b32 s{S_CNT}, 0")
    e.label(lp)
    e(f"buffer_load_dwordx2 v[6:7], v4, {SRD(SRD_P)}, 0 offen sc1")
    e(f"s_add_u32 s{S_CNT}, s{S_CNT}, 1")
    e(f"s_cmp_ge_u32 s{S_CNT}, 0x100000")
    e(f"s_cbranch_scc1 {l}")
    e("s_waitcnt vmcnt(0)")
    e(f"v_cmp_ne_u32 vcc, s{S_TAG}, v6")
    e(f"v_cmp_ne_u32 s[{S_M0}:{S_M0+1}], s{S_TAG+1}, v7")
    e(f"s_or_b64 vcc, vcc, s[{S_M0}:{S_M0+1}]")
    e(f"s_cbranch_scc1 {lp}")
    e.label(l)


def poll_issue(e, addr_fn):
    l = e.new("Lpi")
    e(f"s_cmp_lg_u32 s{S_WAVE}, 4")
    e(f"s_cbranch_scc1 {l}")
    addr_fn(e)
    e("v_lshlrev_b32 v14, 3, v4")
    srd(e, SRD_P, P_WS, WS_FLAG, NFLAG * 8)
    e(f"buffer_load_dwordx2 v[10:11], v14, {SRD(SRD_P)}, 0 offen sc1")
    e.label(l)


def poll_check(e, lds_addr, key):
    lp, l, lc, lo, ld = e.new("Lpoll"), e.new("Lpx"), e.new("Lpc"), e.new("Lpo"), e.new("Lpd")
    e(f"s_xor_b32 s{S_T0}, s{S_TAG}, {key}")
    e(f"v_mov_b32 v4, {lds_addr}")
    e(f"s_mov_b32 s{S_CNT}, 0")
    e(f"s_cmp_lg_u32 s{S_WAVE}, 4")
    e(f"s_cbranch_scc1 {lo}")
    e(f"s_branch {lc}")
    e.label(lp)
    e(f"buffer_load_dwordx2 v[10:11], v14, {SRD(SRD_P)}, 0 offen sc1")
    e(f"s_add_u32 s{S_CNT}, s{S_CNT}, 1")
    e(f"s_cmp_ge_u32 s{S_CNT}, 0x100000")
    e(f"s_cbranch_scc1 {l}")
    e.label(lc)
    e("s_waitcnt vmcnt(0)")
    e(f"v_cmp_ne_u32 vcc, s{S_TAG}, v10")
    e(f"v_cmp_ne_u32 s[{S_M0}:{S_M0+1}], s{S_TAG+1}, v11")
    e(f"s_or_b64 vcc, vcc, s[{S_M0}:{S_M0+1}]")
    e(f"s_cbranch_scc1 {lp}")
    e.label(l)
    e(f"v_mov_b32 v6, s{S_T0}")
    e(f"v_mov_b32 v7, s{S_TAG+1}")
    e("ds_write_b64 v4, v[6:7]")
    e("s_waitcnt lgkmcnt(0)")
    e(f"s_branch {ld}")
    e.label(lo)
    e("ds_read_b64 v[6:7], v4")
    e(f"s_add_u32 s{S_CNT}, s{S_CNT}, 1")
    e(f"s_cmp_ge_u32 s{S_CNT}, 0x1000000")
    e(f"s_cbranch_scc1 {ld}")
    e("s_waitcnt lgkmcnt(0)")
    e(f"v_cmp_ne_u32 vcc, s{S_T0}, v6")
    e(f"v_cmp_ne_u32 s[{S_M0}:{S_M0+1}], s{S_TAG+1}, v7")
    e(f"s_or_b64 vcc, vcc, s[{S_M0}:{S_M0+1}]")
    e(f"s_cbranch_scc1 {lo}")
    e.label(ld)


def fetch_tag(e):
    srd(e, SRD_P, P_DBG, 0, 256)
    lp, lq = e.new("Ltag"), e.new("Ltq")
    e("v_mov_b32 v4, 0")
    e(f"s_mov_b32 s{S_CNT}, 0")
    e.label(lp)
    e(f"buffer_load_dwordx2 v[6:7], v4, {SRD(SRD_P)}, 0 offen sc1")
    e("s_waitcnt vmcnt(0)")
    e(f"v_readfirstlane_b32 s{S_TAG}, v6")
    e(f"v_readfirstlane_b32 s{S_TAG+1}, v7")
    e(f"s_add_u32 s{S_CNT}, s{S_CNT}, 1")
    e(f"s_cmp_ge_u32 s{S_CNT}, 0x100000")
    e(f"s_cbranch_scc1 {lq}")
    e(f"s_cmp_eq_u32 s{S_TAG}, 0")
    e(f"s_cbranch_scc1 {lp}")
    e.label(lq)


def store_flag(e):
    l = e.new("Lfl")
    e(f"s_cmp_lg_u32 s{S_WAVE}, 4")
    e(f"s_cbranch_scc1 {l}")
    srd(e, SRD_P, P_WS, WS_FLAG, NFLAG * 8)
    e(f"s_lshl_b32 s{S_T0}, s{S_FPREV}, 3")
    e(f"s_and_b32 s{S_T1}, s{S_FPREV}, 7")
    e(f"s_lshl_b32 s{S_T1}, s{S_T1}, 5")
    e(f"s_bfe_u32 s{S_T2}, s{S_FPREV}, 0x50003")
    e(f"s_add_u32 s{S_T1}, s{S_T1}, s{S_T2}")
    e(f"s_and_b32 s{S_T2}, s{S_FPREV}, 0xffffff00")
    e(f"s_add_u32 s{S_T1}, s{S_T1}, s{S_T2}")
    e(f"s_add_u32 s{S_T1}, s{S_T1}, 1280")
    e(f"s_lshl_b32 s{S_T1}, s{S_T1}, 3")
    e(f"s_sub_u32 s{S_T1}, s{S_T1}, s{S_T0}")
    e(f"v_mul_u32_u24 v4, s{S_T1}, v1")
    e(f"v_add_u32 v4, s{S_T0}, v4")
    e(f"v_mov_b32 v6, s{S_TAG}")
    e(f"v_mov_b32 v7, s{S_TAG+1}")
    e("s_mov_b64 exec, 3")
    e(f"buffer_store_dwordx2 v[6:7], v4, {SRD(SRD_P)}, 0 offen sc1")
    e("s_mov_b64 exec, -1")
    e.label(l)


def loader_setup(e, c):
    e("v_lshrrev_b32 v2, 3, v1")
    e("v_and_b32 v3, 7, v1")
    e(f"s_mul_i32 s{S_T1}, s{S_WL}, {c.nAw*8}")
    e(f"s_mov_b32 s{S_T2}, {c.lda}")
    if c.fimg:
        e(f"s_lshr_b32 s{S_T1}, s{S_ROW0}, 4")
        e(f"s_mul_i32 s{S_T2}, s{S_WL}, {c.nAw//2}")
        e(f"s_add_u32 s{S_T1}, s{S_T1}, s{S_T2}")
        e(f"s_mul_i32 s{S_T1}, s{S_T1}, {c.K*32}")
        e(f"v_lshl_add_u32 v4, v1, 4, s{S_T1}")
        for i in range(c.nAw):
            e(f"v_add_u32 v{LVA+i}, {(i>>1)*c.K*32 + (i&1)*1024}, v4")
    for i in range(0 if c.fimg else c.nAw):
        e(f"v_add3_u32 v4, v2, s{S_T1}, {8*i}")
        e("v_bfe_u32 v5, v4, 1, 3")
        e("v_xor_b32 v5, v5, v3")
        e("v_lshlrev_b32 v5, 4, v5")
        e(f"v_add_u32 v4, s{S_ROW0}, v4")
        e(f"v_mad_u32_u24 v{LVA+i}, v4, s{S_T2}, v5")
    if c.packed:
        e(f"s_mul_i32 s{S_T1}, s{S_WL}, {c.nBw*1024}")
        e(f"v_lshl_add_u32 v4, v1, 4, s{S_T1}")
        e("v_bfrev_b32 v7, 1")
        for i in range(c.nBw):
            e(f"v_add_u32 v{LVB+i}, {1024*i}, v4")
            e(f"v_cmp_gt_u32 vcc, {c.BSTEP}, v{LVB+i}")
            e("s_nop 1")
            e(f"v_cndmask_b32 v{LVB+i}, v7, v{LVB+i}, vcc")
    M = -(-65536 // c.CPR)
    e(f"s_mul_i32 s{S_T1}, s{S_WL}, {c.nBw*64}")
    e(f"s_lshl_b32 s{S_T3}, s{S_COL0}, 1")
    e(f"s_mov_b32 s{S_T2}, {M}")
    e(f"s_mov_b32 s{S_T0}, {c.ldb}")
    e("v_bfrev_b32 v7, 1")
    for i in range(0 if c.packed else c.nBw):
        e(f"v_add_u32 v4, s{S_T1}, v1")
        if i:
            e(f"v_add_u32 v4, {64*i}, v4")
        e(f"v_mul_u32_u24 v5, s{S_T2}, v4")
        e("v_lshrrev_b32 v5, 16, v5")
        e(f"v_mul_u32_u24 v6, {c.CPR}, v5")
        e("v_sub_u32 v4, v4, v6")
        for sb, db in c.swz:
            e(f"v_bfe_u32 v6, v5, {sb}, 1")
            e(f"v_lshlrev_b32 v6, {db+1}, v6")
            e("v_xor_b32 v4, v4, v6")
        if c.NT * 2 < c.CPR:
            e(f"v_cmp_gt_u32 vcc, {c.NT*2}, v4")
        e("v_lshlrev_b32 v4, 4, v4")
        e(f"v_add_u32 v4, s{S_T3}, v4")
        e(f"v_mad_u32_u24 v{LVB+i}, v5, s{S_T0}, v4")
        if c.NT * 2 < c.CPR:
            e(f"v_cndmask_b32 v{LVB+i}, v7, v{LVB+i}, vcc")
    e(f"s_mul_i32 s{S_MA}, s{S_WL}, {c.nAw*1024}")
    e(f"s_mul_i32 s{S_MB}, s{S_WL}, {c.nBw*1024}")
    e(f"s_add_u32 s{S_MB}, s{S_MB}, {c.ABYTES + c.s0*c.BUFSZ}")
    if c.s0:
        e(f"s_add_u32 s{S_MA}, s{S_MA}, {c.s0*c.BUFSZ}")
    e(f"s_mov_b32 s{S_KA}, 0")
    if c.packed:
        e(f"s_mul_i32 s{S_KB}, s{S_CT}, {c.NS*c.BSTEP}")
    else:
        e(f"s_mov_b32 s{S_KB}, 0")


def touch_contig(e, srdreg, s_start, nbytes):
    nl = -(-nbytes // 128)
    e(f"v_lshl_add_u32 v4, s{S_WL}, 6, v1")
    e("v_lshlrev_b32 v4, 7, v4")
    for i in range(-(-nl // 256)):
        if i:
            e("v_add_u32 v4, 0x8000, v4")
        e(f"v_min_u32 v5, {nbytes-4}, v4")
        e(f"buffer_load_dword v15, v5, {SRD(srdreg)}, {s_start} offen")


def touch_task(e, t):
    if 'notouch' in OPT or not getattr(t, 'share', None):
        return
    c = t.c
    (nA, shA), (nB, shB) = t.share
    abytes = c.Tm * c.K * 2 // nA
    shA(e, S_T0)
    e(f"s_mul_i32 s{S_T0}, s{S_T0}, {abytes}")
    e(f"s_mul_i32 s{S_T1}, s{S_ROW0}, {c.K*2}")
    e(f"s_add_u32 s{S_T0}, s{S_T0}, s{S_T1}")
    touch_contig(e, SRD_A, f"s{S_T0}", abytes)
    shB(e, S_T0)
    if c.packed:
        bbytes = c.NS * c.BSTEP // nB
        e(f"s_mul_i32 s{S_T0}, s{S_T0}, {bbytes}")
        e(f"s_add_u32 s{S_T0}, s{S_T0}, s{S_KB}")
        touch_contig(e, SRD_B, f"s{S_T0}", bbytes)
    else:
        rows = c.K // nB
        w = c.Tn * 2
        per = 2 if w % 128 == 0 else 4
        e(f"s_mul_i32 s{S_T0}, s{S_T0}, {rows*c.ldb}")
        e(f"s_lshl_b32 s{S_T1}, s{S_COL0}, 1")
        e(f"s_add_u32 s{S_T0}, s{S_T0}, s{S_T1}")
        e(f"s_mov_b32 s{S_T1}, {c.ldb}")
        e(f"v_lshl_add_u32 v4, s{S_WL}, 6, v1")
        for i in range(-(-(rows * per) // 256)):
            if i:
                e("v_add_u32 v4, 0x100, v4")
            e(f"v_lshrrev_b32 v5, {per.bit_length()-1}, v4")
            e(f"v_min_u32 v5, {rows-1}, v5")
            e(f"v_and_b32 v6, {per-1}, v4")
            e("v_lshlrev_b32 v6, 7, v6")
            e(f"v_min_u32 v6, {w-4}, v6")
            e(f"v_mad_u32_u24 v5, v5, s{S_T1}, v6")
            e(f"buffer_load_dword v15, v5, {SRD(SRD_B)}, s{S_T0} offen")


def issue(e, c, asc):
    for i in range(c.nAw):
        e(f"s_add_u32 m0, s{S_MA}, {1024*i}")
        e("s_nop 0")
        if 'noload' not in OPT:
            e(f"buffer_load_dwordx4 v{LVA+i}, {SRD(SRD_A)}, s{S_KA} offen{asc} lds")
    for i in range(c.nBw):
        e(f"s_add_u32 m0, s{S_MB}, {1024*i}")
        e("s_nop 0")
        if 'noload' not in OPT:
            e(f"buffer_load_dwordx4 v{LVB+i}, {SRD(SRD_B)}, s{S_KB} offen{SC if c.packed else ''} lds")
    e(f"s_add_u32 s{S_KA}, s{S_KA}, {2048 if c.fimg else 128}")
    e(f"s_add_u32 s{S_KB}, s{S_KB}, {c.BSTEP if c.packed else 64*c.ldb}")
    e(f"s_add_u32 s{S_MA}, s{S_MA}, {c.BUFSZ}")
    e(f"s_add_u32 s{S_MB}, s{S_MB}, {c.BUFSZ}")
    e(f"s_cmp_ge_u32 s{S_MA}, {c.NBUF*c.BUFSZ}")
    e(f"s_cselect_b32 s{S_BUF}, {c.NBUF*c.BUFSZ}, 0")
    e(f"s_sub_u32 s{S_MA}, s{S_MA}, s{S_BUF}")
    e(f"s_sub_u32 s{S_MB}, s{S_MB}, s{S_BUF}")


def issue_n(e, c, asc, k):
    if k == 0:
        return
    if k == 1:
        issue(e, c, asc)
        return
    lp = e.new("Liss")
    e(f"s_mov_b32 s{S_CNT}, {k}")
    e.label(lp)
    issue(e, c, asc)
    e(f"s_sub_u32 s{S_CNT}, s{S_CNT}, 1")
    e(f"s_cmp_lg_u32 s{S_CNT}, 0")
    e(f"s_cbranch_scc1 {lp}")


PUBJ = int(os.environ.get("PUBJ", "3"))


def loader_main(e, c, asc, E, pub=False, hook=None):
    e(f"s_waitcnt vmcnt({c.n*(E-1)})")
    e("s_barrier")
    issue_n(e, c, asc, c.P - E + 1)
    lm = e.new("Lldm")
    e(f"s_mov_b32 s{S_CNT}, {c.NS - c.P - 1}")
    e.label(lm)
    e(f"s_waitcnt vmcnt({c.n*(c.P-1)})")
    e("s_barrier")
    if pub:
        l = e.new("Lnp")
        e(f"s_cmp_lg_u32 s{S_CNT}, {c.NS - c.P - PUBJ}")
        e(f"s_cbranch_scc1 {l}")
        store_flag(e)
        e.label(l)
    issue(e, c, asc)
    e(f"s_sub_u32 s{S_CNT}, s{S_CNT}, 1")
    e(f"s_cmp_lg_u32 s{S_CNT}, 0")
    e(f"s_cbranch_scc1 {lm}")
    nx = hook(e) if hook else 0
    for j in range(c.P):
        e(f"s_waitcnt vmcnt({c.n*(c.P-1-j) + nx})")
        e("s_barrier")


class Regs:
    def __init__(self, c, nextra):
        self.ACC = 16
        p = self.ACC + c.mt * c.nt * 4
        self.R = []
        for s in range(2):
            X = p; p += c.mt * 4
            W = p; p += c.nt * 4
            self.R.append((X, W))
        self.EX = p; p += nextra * 4
        self.ONES = p; p += 4
        assert p <= VPRE, p
        self.c = c

    def acc(self, i, t):
        return self.ACC + (i * self.c.nt + t) * 4


def wmwn(e, c):
    if c.WN == 2:
        e(f"s_lshr_b32 s{S_T0}, s{S_WAVE}, 1")
        e(f"s_and_b32 s{S_T1}, s{S_WAVE}, 1")
    else:
        e(f"s_mov_b32 s{S_T0}, s{S_WAVE}")
        e(f"s_mov_b32 s{S_T1}, 0")


def gtile(e, c, t, dst):
    e(f"s_mul_i32 s{dst}, s{S_WAVE}, {c.rot}")
    e(f"s_add_u32 s{dst}, s{dst}, {t}")
    e(f"s_cmp_ge_u32 s{dst}, {c.nt}")
    e(f"s_cselect_b32 s{S_K3}, {c.nt}, 0")
    e(f"s_sub_u32 s{dst}, s{dst}, s{S_K3}")


def consumer_main(e, c, R, extras=None, nzero=0, post=None, mid=None):
    pub = PUB[0]
    e.c("---- consumer ----")
    e(f"v_and_b32 v{VJ}, 15, v1")
    e(f"v_lshrrev_b32 v{VG}, 4, v1")
    wmwn(e, c)
    if c.fimg:
        e("v_lshlrev_b32 v4, 4, v1")
    else:
        e(f"v_bfe_u32 v4, v{VJ}, 1, 3")
        e(f"v_xor_b32 v4, v4, v{VG}")
        e("v_lshlrev_b32 v4, 4, v4")
        e(f"v_lshl_add_u32 v4, v{VJ}, 7, v4")
    e(f"s_mul_i32 s{S_T2}, s{S_T0}, {c.mt*2048}")
    if c.s0:
        e(f"s_add_u32 s{S_T2}, s{S_T2}, {c.s0*c.BUFSZ}")
    e(f"v_add_u32 v{VA0}, s{S_T2}, v4")
    if not c.fimg:
        e(f"v_xor_b32 v{VA1}, 64, v{VA0}")
    if c.packed:
        e(f"v_lshrrev_b32 v4, 2, v{VJ}")
        e(f"v_and_b32 v5, 1, v{VG}")
        e("v_lshl_add_u32 v4, v5, 2, v4")
        e(f"v_lshrrev_b32 v5, 1, v{VG}")
        e("v_lshl_add_u32 v4, v5, 4, v4")
        e(f"v_mul_u32_u24 v4, {c.PSB}, v4")
        e(f"v_and_b32 v5, 3, v{VJ}")
        e("v_lshl_add_u32 v4, v5, 3, v4")
        e(f"v_add_u32 v{VBT}, {c.ABYTES + c.s0*c.BUFSZ}, v4")
        if c.rot:
            e(f"v_mov_b32 v4, v{VBT}")
            for t in range(c.nt):
                gtile(e, c, t, S_T2)
                e(f"s_lshl_b32 s{S_T2}, s{S_T2}, 5")
                e(f"v_add_u32 v{VBT+t}, s{S_T2}, v4")
    else:
        e(f"v_lshrrev_b32 v4, 2, v{VJ}")
        e(f"v_lshl_add_u32 v4, v{VG}, 3, v4")
        e("v_mov_b32 v6, 0")
        for sb, db in c.swz:
            e(f"v_bfe_u32 v5, v4, {sb}, 1")
            e(f"v_lshl_or_b32 v6, v5, {db}, v6")
        e(f"v_mul_u32_u24 v4, {c.SB}, v4")
        e(f"v_and_b32 v5, 3, v{VJ}")
        e("v_lshl_add_u32 v4, v5, 3, v4")
        e(f"v_add_u32 v4, {c.ABYTES + c.s0*c.BUFSZ}, v4")
        e(f"s_mul_i32 s{S_T3}, s{S_T1}, {c.nt}")
        for t in range(c.nt):
            e(f"s_add_u32 s{S_T2}, s{S_T3}, {t}")
            e(f"v_xor_b32 v5, s{S_T2}, v6")
            e(f"v_lshl_add_u32 v{VBT+t}, v5, 5, v4")
    e(f"s_mul_i32 s{S_T2}, s{S_WAVE}, {c.WSTG}")
    e(f"s_add_u32 s{S_T2}, s{S_T2}, {c.STG}")
    e(f"v_mul_u32_u24 v4, {c.RS}, v{VJ}")
    e(f"v_lshl_add_u32 v4, v{VG}, 3, v4")
    e(f"v_add_u32 v{VSTG}, s{S_T2}, v4")
    for r in range(R.ACC, R.ACC + c.mt * c.nt * 4):
        e(f"v_mov_b32 v{r}, 0")
    if extras:
        for r in range(R.EX, R.EX + nzero):
            e(f"v_mov_b32 v{r}, 0")
        for r in range(R.ONES, R.ONES + 4):
            e(f"v_mov_b32 v{r}, 0x3f803f80")

    def reads(s, ks):
        X, W = R.R[s]
        out = []
        va = VA0 if (ks == 0 or c.fimg) else VA1
        for i in range(c.mt):
            out.append(f"ds_read_b128 {vr(X+4*i,4)}, v{va} offset:{i*2048 + (1024*ks if c.fimg else 0)}")
        for t in range(c.nt):
            for h in range(2):
                if c.packed and c.rot:
                    out.append(f"ds_read_b64_tr_b16 {vr(W+4*t+2*h,2)}, v{VBT+t} offset:{(32*ks+8*h)*c.PSB}")
                elif c.packed:
                    out.append(f"ds_read_b64_tr_b16 {vr(W+4*t+2*h,2)}, v{VBT} offset:{(32*ks+8*h)*c.PSB + t*32}")
                else:
                    out.append(f"ds_read_b64_tr_b16 {vr(W+4*t+2*h,2)}, v{VBT+t} offset:{(32*ks+4*h)*c.SB}")
        return out

    def mfmas(s):
        X, W = R.R[s]
        out = []
        for t in range(c.nt):
            for i in range(c.mt):
                a = R.acc(i, t)
                out.append(f"v_mfma_f32_16x16x32_bf16 {vr(a,4)}, {vr(W+4*t,4)}, {vr(X+4*i,4)}, {vr(a,4)}")
        if extras:
            out += extras(s)
        return out

    def interleave(ms, rs):
        if 'nomfma' in OPT: ms = []
        k = 0
        per = -(-len(rs) // max(1, len(ms) - 2)) if rs else 0
        for m in ms:
            e(m)
            for _ in range(per):
                if k < len(rs):
                    e(rs[k]); k += 1
        while k < len(rs):
            e(rs[k]); k += 1

    def advance():
        e(f"s_add_u32 s{S_BUF}, s{S_BUF}, {c.BUFSZ}")
        e(f"s_cmp_ge_u32 s{S_BUF}, {c.NBUF*c.BUFSZ}")
        e(f"s_cselect_b32 s{S_T2}, {c.NBUF*c.BUFSZ}, 0")
        e(f"s_sub_u32 s{S_BUF}, s{S_BUF}, s{S_T2}")
        e(f"s_sub_u32 s{S_T2}, {c.BUFSZ}, s{S_T2}")
        for v in ([VA0] if c.fimg else [VA0, VA1]) + [VBT + t for t in range(1 if (c.packed and not c.rot) else c.nt)]:
            e(f"v_add_u32 v{v}, s{S_T2}, v{v}")

    e(f"s_mov_b32 s{S_BUF}, {c.s0*c.BUFSZ}")
    stamp(e, 1)
    e("s_barrier")
    stamp(e, 2)
    for r in reads(0, 0):
        e(r)
    if post:
        post(e)
    lp = e.new("Lc")

    def body(last):
        e("s_waitcnt lgkmcnt(0)")
        interleave(mfmas(0), reads(1, 1))
        if not last:
            advance()
        e("s_waitcnt lgkmcnt(0)")
        if not last:
            if pub:
                l = e.new("Ldr")
                e(f"s_cmp_lg_u32 s{S_CNT}, {c.NS - PUBJ}")
                e(f"s_cbranch_scc1 {l}")
                e("s_waitcnt vmcnt(0)")
                e.label(l)
            if mid:
                l = e.new("Lmid")
                e(f"s_cmp_lg_u32 s{S_CNT}, {c.NS - mid[0]}")
                e(f"s_cbranch_scc1 {l}")
                mid[1](e)
                e.label(l)
            e("s_barrier")
            interleave(mfmas(1), reads(0, 0))
        else:
            interleave(mfmas(1), [])
    e(f"s_mov_b32 s{S_CNT}, {c.NS-1}")
    e.label(lp)
    body(False)
    e(f"s_sub_u32 s{S_CNT}, s{S_CNT}, 1")
    e(f"s_cmp_lg_u32 s{S_CNT}, 0")
    e(f"s_cbranch_scc1 {lp}")
    body(True)
    e.nop(10)
    stamp(e, 3)


def stage_write(e, c, i, t, p):
    e(f"ds_write_b64 v{VSTG}, {vr(p,2)} offset:{i*16*c.RS + t*32}")


def stage_plain(e, c, R):
    T = R.R[0][0]
    k = 0
    for i in range(c.mt):
        for t in range(c.nt):
            a = R.acc(i, t)
            p = T + 2 * (k % 8); k += 1
            e(f"v_cvt_pk_bf16_f32 v{p}, v{a}, v{a+1}")
            e(f"v_cvt_pk_bf16_f32 v{p+1}, v{a+2}, v{a+3}")
            stage_write(e, c, i, t, p)


def stage_read(e, c, dst):
    e("s_waitcnt lgkmcnt(0)")
    for it in range(c.NI):
        e(f"ds_read_b128 {vr(dst+4*it,4)}, v{VL} offset:{it*c.RPI*c.RS}")


GELU_C0 = 2.0 * 0.7978845608028654 * 1.4426950408889634
GELU_C1 = GELU_C0 * 0.044715
X8, Y8, T8 = 40, 48, 56


def ln_gelu_tile(e, a, cs, vmb, vrs, T, p):
    for r in range(4):
        e(f"v_fma_f32 v{a+r}, -v{vmb}, v{cs+r}, v{a+r}")
    e(f"v_pk_mul_f32 {vr(a,2)}, {vr(a,2)}, {vr(vrs,2)}")
    e(f"v_pk_mul_f32 {vr(a+2,2)}, {vr(a+2,2)}, {vr(vrs,2)}")
    e(f"v_cvt_pk_bf16_f32 v{T+4}, v{a}, v{a+1}")
    e(f"v_cvt_pk_bf16_f32 v{T+5}, v{a+2}, v{a+3}")
    unpack2(e, a, T + 4)
    unpack2(e, a + 2, T + 5)
    for h in (0, 2):
        e(f"v_pk_mul_f32 {vr(T+h,2)}, {vr(a+h,2)}, {vr(a+h,2)}")
    for h in (0, 2):
        e(f"v_pk_fma_f32 {vr(T+h,2)}, {vr(T+h,2)}, {vr(VKC,2)}, {vr(VKC+2,2)}")
    for h in (0, 2):
        e(f"v_pk_mul_f32 {vr(T+h,2)}, {vr(T+h,2)}, {vr(a+h,2)}")
    for r in range(4):
        e(f"v_exp_f32 v{T+r}, v{T+r}")
    e("s_nop 0")
    for h in (0, 2):
        e(f"v_pk_add_f32 {vr(T+h,2)}, {vr(T+h,2)}, {vr(VKC+4,2)}")
    for r in range(4):
        e(f"v_rcp_f32 v{T+r}, v{T+r}")
    e("s_nop 0")
    for h in (0, 2):
        e(f"v_pk_mul_f32 {vr(a+h,2)}, {vr(a+h,2)}, {vr(T+h,2)}")
    e(f"v_cvt_pk_bf16_f32 v{p}, v{a}, v{a+1}")
    e(f"v_cvt_pk_bf16_f32 v{p+1}, v{a+2}, v{a+3}")


VKC = 236


def gelu_consts(e):
    for h in range(2):
        e(f"v_mov_b32 v{VKC+h}, {hex(f32bits(-GELU_C1))}")
        e(f"v_mov_b32 v{VKC+2+h}, {hex(f32bits(-GELU_C0))}")
        e(f"v_mov_b32 v{VKC+4+h}, 1.0")


def rnd8(e, a):
    for q in range(4):
        e(f"v_cvt_pk_bf16_f32 v{T8+q}, v{a+2*q}, v{a+2*q+1}")
    for q in range(4):
        unpack2(e, a + 2 * q, T8 + q)


def ln_from_sums(e, vsum, vsq, vmb, vrs, t):
    e(f"v_mul_f32 v{vsum}, {hex(f32bits(1.0/640))}, v{vsum}")
    e(f"v_mul_f32 v{vsq}, {hex(f32bits(1.0/640))}, v{vsq}")
    e(f"v_fma_f32 v{vsq}, -v{vsum}, v{vsum}, v{vsq}")
    e(f"v_max_f32 v{vsq}, 0, v{vsq}")
    bf16r(e, vmb, vsum)
    bf16r(e, t, vsq)
    e(f"v_add_f32 v{t}, {hex(f32bits(1e-5))}, v{t}")
    bf16r(e, t, t)
    e(f"v_sqrt_f32 v{t}, v{t}")
    e("s_nop 0")
    bf16r(e, t, t)
    e(f"v_rcp_f32 v{vrs}, v{t}")
    e("s_nop 0")


def xreduce(e, regs, t0, t1):
    for op in ("v_permlane32_swap_b32", "v_permlane16_swap_b32"):
        for r in regs:
            e(f"v_mov_b32 v{t0}, v{r}")
            e(f"v_mov_b32 v{t1}, v{r}")
            e("s_nop 1")
            e(f"{op} v{t0}, v{t1}")
            e("s_nop 0")
            e(f"v_add_f32 v{r}, v{t0}, v{t1}")


class Task:
    pass


def decode_small(e):
    e(f"s_lshr_b32 s5, s{S_XCD}, 1")
    e(f"s_and_b32 s3, s{S_XCD}, 1")
    e(f"s_and_b32 s6, s{S_SLOT}, 7")
    e("s_lshl_b32 s5, s5, 3")
    e(f"s_add_u32 s{S_RB}, s5, s6")
    e(f"s_lshr_b32 s4, s{S_SLOT}, 3")
    e("s_lshl_b32 s3, s3, 2")
    e(f"s_add_u32 s{S_CT}, s3, s4")
    e(f"s_lshl_b32 s{S_ROW0}, s{S_RB}, 6")
    e(f"s_mul_i32 s{S_COL0}, s{S_CT}, 80")
    e(f"s_lshl_b32 s{S_FNEXT}, s{S_RB}, 3")
    e(f"s_add_u32 s{S_FNEXT}, s{S_FNEXT}, s{S_CT}")


def add_col_deps(e, base):
    e("v_and_b32 v5, 31, v1")
    e(f"s_lshl_b32 s{S_T0}, s{S_CT}, 5")
    e(f"s_add_u32 s{S_T0}, s{S_T0}, {base + 1280}")
    e(f"v_add_u32 v5, s{S_T0}, v5")
    e("v_cmp_gt_u32 vcc, 32, v1")
    e("s_nop 1")
    e("v_cndmask_b32 v4, v5, v4, vcc")


def build_tasks():
    KB = 1024
    T = {}
    t = Task(); T[1] = t
    t.c = Cfg(64, 80, 640, 192, 5, 4, 1, 1280, 1280, 1280, 100 * KB)
    t.asc = ""
    t.decode = decode_small
    t.deps = None
    t.srd_ab = lambda e: (srd(e, SRD_A, P_X, 0, S * 1280), srd(e, SRD_B, P_W1, 0, 640 * 1280))
    t.srd_c = lambda e: srd(e, SRD_C, P_WS, WS_HS, S * 1280)
    t.shift = True
    t.nbar = 0
    t = Task(); T[2] = t
    t.c = Cfg(128, 128, 640, 256, 5, 2, 2, 1280, 3840, 3840, 90 * KB)
    t.asc = ""

    def dec2(e):
        e(f"s_lshr_b32 s5, s{S_XCD}, 2")
        e(f"s_and_b32 s3, s{S_XCD}, 3")
        e(f"s_and_b32 s6, s{S_SLOT}, 7")
        e("s_lshl_b32 s5, s5, 3")
        e(f"s_add_u32 s{S_RB}, s5, s6")
        e(f"s_lshr_b32 s4, s{S_SLOT}, 3")
        e("s_lshl_b32 s4, s4, 2")
        e(f"s_add_u32 s{S_CT}, s4, s3")
        e(f"s_lshl_b32 s{S_FNEXT}, s{S_RB}, 4")
        e(f"s_add_u32 s{S_FNEXT}, s{S_FNEXT}, s{S_CT}")
        e(f"s_add_u32 s{S_FNEXT}, s{S_FNEXT}, 256")
        e(f"s_min_u32 s{S_CT}, s{S_CT}, 14")
        e(f"s_lshl_b32 s{S_ROW0}, s{S_RB}, 7")
        e(f"s_lshl_b32 s{S_COL0}, s{S_CT}, 7")
    t.decode = dec2
    t.deps = None
    t.srd_ab = lambda e: (srd(e, SRD_A, P_X, 0, S * 1280), srd(e, SRD_B, P_WQKV, 0, 640 * 3840))
    t.srd_c = lambda e: srd(e, SRD_C, P_WS, WS_QKV, S * 3840)
    t.shift = False
    t.nbar = 0
    t = Task(); T[3] = t
    t.c = Cfg(64, 80, 640, 192, 5, 4, 1, 1280, 1280, 1280, 100 * KB, packed=True, fimg=True)
    t.asc = SC
    t.decode = lambda e: (decode_small(e), e(f"s_add_u32 s{S_FNEXT}, s{S_FNEXT}, 512"))

    def deps3(e):
        e("v_lshrrev_b32 v4, 3, v1")
        e("v_min_u32 v4, 2, v4")
        e(f"s_sub_u32 s{S_T0}, s{S_RB}, 1")
        e(f"v_add_u32 v4, s{S_T0}, v4")
        e("v_max_i32 v4, 0, v4")
        e("v_min_i32 v4, 31, v4")
        e("v_and_b32 v5, 7, v1")
        e("v_lshl_add_u32 v4, v4, 3, v5")
        add_col_deps(e, 0)
    t.deps = deps3
    t.srd_ab = lambda e: (srd(e, SRD_A, P_WS, WS_HS, S * 1280), srd(e, SRD_B, P_WS, WS_W2I, 640 * 1280))
    t.srd_c = lambda e: (srd(e, SRD_C, P_WS, WS_X1, S * 1280), srd(e, SRD_D, P_X, 0, S * 1280), srd(e, SRD_F, P_WS, WS_PART, S * 128))
    t.shift = False
    t.nbar = 0
    t = Task(); T[5] = t
    t.c = Cfg(128, 112, 640, 256, 5, 4, 1, 1280, 3456, 3456, 96 * KB, s0=3, packed=True, fimg=True, rot=2)
    t.asc = SC

    def dec5(e):
        e(f"s_lshr_b32 s5, s{S_XCD}, 1")
        e(f"s_and_b32 s3, s{S_XCD}, 1")
        e(f"s_and_b32 s6, s{S_SLOT}, 3")
        e("s_lshl_b32 s5, s5, 2")
        e(f"s_add_u32 s{S_RB}, s5, s6")
        e(f"s_lshr_b32 s4, s{S_SLOT}, 2")
        e("s_lshl_b32 s3, s3, 3")
        e(f"s_add_u32 s{S_CT}, s3, s4")
        e(f"s_lshl_b32 s{S_ROW0}, s{S_RB}, 7")
        e(f"s_mul_i32 s{S_COL0}, s{S_CT}, 27")
        e(f"s_lshr_b32 s{S_COL0}, s{S_COL0}, 1")
        e(f"s_lshl_b32 s{S_COL0}, s{S_COL0}, 3")
        e(f"s_lshl_b32 s{S_FNEXT}, s{S_RB}, 4")
        e(f"s_add_u32 s{S_FNEXT}, s{S_FNEXT}, s{S_CT}")
        e(f"s_add_u32 s{S_FNEXT}, s{S_FNEXT}, 1024")
    t.decode = dec5

    def deps5(e):
        e(f"s_lshl_b32 s{S_T0}, s{S_RB}, 4")
        e(f"s_add_u32 s{S_T0}, s{S_T0}, 512")
        e("v_and_b32 v4, 15, v1")
        e(f"v_add_u32 v4, s{S_T0}, v4")
        e("v_and_b32 v5, 15, v1")
        e(f"s_and_b32 s{S_T0}, s{S_CT}, 1")
        e(f"s_lshr_b32 s{S_T1}, s{S_CT}, 1")
        e(f"s_lshl_b32 s{S_T1}, s{S_T1}, 5")
        e(f"s_add_u32 s{S_T0}, s{S_T0}, s{S_T1}")
        e(f"s_add_u32 s{S_T0}, s{S_T0}, {512 + 1280}")
        e(f"v_lshl_add_u32 v5, v5, 1, s{S_T0}")
        e("v_cmp_gt_u32 vcc, 32, v1")
        e("s_nop 1")
        e("v_cndmask_b32 v4, v5, v4, vcc")
    t.deps = deps5
    t.srd_ab = lambda e: (srd(e, SRD_A, P_WS, WS_X1, S * 1280), srd(e, SRD_B, P_WS, WS_W3I, 16 * 640 * 224))
    t.srd_c = lambda e: (srd(e, SRD_C, P_WS, WS_H3, S * 3456), srd(e, SRD_F, P_WS, WS_PART, S * 128))
    t.shift = False
    t.nbar = 1
    t = Task(); T[6] = t
    t.c = Cfg(64, 80, 640, 192, 5, 4, 1, 1280, 1280, 1280, 100 * KB, packed=True, fimg=True)
    t.asc = SC
    t.decode = decode_small

    def deps6(e):
        e(f"s_lshl_b32 s{S_T0}, s{S_RB}, 3")
        e(f"s_add_u32 s{S_T0}, s{S_T0}, 768")
        e("v_and_b32 v4, 7, v1")
        e(f"v_add_u32 v4, s{S_T0}, v4")
    t.deps = deps6
    t.srd_ab = lambda e: (srd(e, SRD_A, P_WS, WS_O, S * 1280), srd(e, SRD_B, P_WS, WS_WOI, 640 * 1280))
    t.srd_c = lambda e: srd(e, SRD_F, P_WS, WS_G, S * 4)
    t.shift = False
    t.nbar = 0
    t = Task(); T[7] = t
    t.c = Cfg(64, 80, 1728, 192, 8, 4, 1, 3456, 1280, 1280, 100 * KB, packed=True, fimg=True)
    t.asc = SC
    t.decode = decode_small

    def deps7(e):
        e(f"s_lshr_b32 s{S_T0}, s{S_RB}, 1")
        e(f"s_lshl_b32 s{S_T0}, s{S_T0}, 4")
        e(f"s_add_u32 s{S_T0}, s{S_T0}, 1024")
        e("v_and_b32 v4, 15, v1")
        e(f"v_add_u32 v4, s{S_T0}, v4")
        add_col_deps(e, 768)
    t.deps = deps7
    t.srd_ab = lambda e: (srd(e, SRD_A, P_WS, WS_H3, S * 3456), srd(e, SRD_B, P_WS, WS_W4I, F * 1280))
    t.srd_c = lambda e: srd(e, SRD_C, P_OUT, 0, S * 1280)
    t.shift = False
    t.nbar = 0
    hi3 = lambda e, d: e(f"s_lshr_b32 s{d}, s{S_SLOT}, 3")
    lo3 = lambda e, d: e(f"s_and_b32 s{d}, s{S_SLOT}, 7")
    hi2 = lambda e, d: e(f"s_lshr_b32 s{d}, s{S_SLOT}, 2")
    lo2 = lambda e, d: e(f"s_and_b32 s{d}, s{S_SLOT}, 3")
    for k in (2, 3, 6, 7):
        T[k].share = ((4, hi3), (8, lo3))
    T[5].share = ((8, hi2), (4, lo2))
    return T


VPK = 120


def pack_load(e, jobs, VPK=120, NSL=6):
    slot = 0
    for (ptr, nbytes, ld, rows, cpr, setup, img) in jobs:
        setup(e)
        srd(e, SRD_P, ptr, 0, nbytes)
        M = -(-65536 // cpr)
        nch = rows * cpr
        for sidx in range(-(-nch // 256)):
            d = VPK + 4 * slot
            o = VPK + 4 * NSL + slot
            e(f"v_add_u32 v4, {256*sidx}, v0")
            e(f"v_mul_u32_u24 v5, {M}, v4")
            e("v_lshrrev_b32 v5, 16, v5")
            e(f"v_mul_u32_u24 v6, {cpr}, v5")
            e("v_sub_u32 v6, v4, v6")
            e("v_lshlrev_b32 v6, 4, v6")
            e(f"v_cmp_gt_u32 vcc, {nch}, v4")
            e(f"v_add_u32 v5, s{S_T0}, v5")
            e(f"v_mul_u32_u24 v7, {ld}, v5")
            e(f"v_add3_u32 v7, v7, v6, s{S_T1}")
            e("v_bfrev_b32 v4, 1")
            e("v_cndmask_b32 v7, v4, v7, vcc")
            e(f"buffer_load_dwordx4 {vr(d,4)}, v7, {SRD(SRD_P)}, 0 offen")
            e("v_bfe_u32 v7, v5, 2, 1")
            e(f"v_bfe_u32 v{o}, v5, 3, 1")
            e("v_and_b32 v5, 0xfffffff3, v5")
            e("v_lshl_or_b32 v5, v7, 3, v5")
            e(f"v_lshl_or_b32 v5, v{o}, 2, v5")
            e(f"v_mul_u32_u24 v5, {cpr*16}, v5")
            e(f"v_add3_u32 v5, v5, v6, s{S_T2}")
            e(f"v_cndmask_b32 v{o}, v4, v5, vcc")
            slot += 1
    return slot


def pack_store(e, nslot, VPK=120, NSL=6, wait=0):
    srd(e, SRD_P, P_WS, 0, 0x2800000)
    if wait is not None:
        e(f"s_waitcnt vmcnt({wait})")
    for slot in range(nslot):
        e(f"buffer_store_dwordx4 {vr(VPK+4*slot,4)}, v{VPK+4*NSL+slot}, {SRD(SRD_P)}, 0 offen{SC}")


def job_small(ptr, K, img):
    rows = K // 32
    def setup(e):
        e(f"s_mul_i32 s{S_T0}, s{S_RB}, {rows}")
        e(f"s_mul_i32 s{S_T1}, s{S_CT}, 160")
        e(f"s_mul_i32 s{S_T2}, s{S_CT}, {K*160}")
        e(f"s_add_u32 s{S_T2}, s{S_T2}, {img}")
    return (ptr, K * 1280, 1280, rows, 10, setup, img)


def job_w3():
    def setup(e):
        e(f"s_and_b32 s{S_T3}, s{S_RB}, 1")
        e(f"s_lshl_b32 s{S_T2}, s{S_CT}, 1")
        e(f"s_add_u32 s{S_T3}, s{S_T3}, s{S_T2}")
        e(f"s_lshr_b32 s{S_T0}, s{S_RB}, 1")
        e(f"s_mul_i32 s{S_T0}, s{S_T0}, 40")
        e(f"s_mul_i32 s{S_T1}, s{S_T3}, 27")
        e(f"s_lshr_b32 s{S_T1}, s{S_T1}, 1")
        e(f"s_lshl_b32 s{S_T1}, s{S_T1}, 4")
        e(f"s_mul_i32 s{S_T2}, s{S_T3}, {640*224}")
        e(f"s_add_u32 s{S_T2}, s{S_T2}, {WS_W3I}")
    return (P_W3, 640 * 3456, 3456, 40, 14, setup, WS_W3I)


VF4, VF2, VFB, VG1 = 234, 235, 242, 243


def fimg_addrs(e, c, Kout, shift=False):
    e(f"s_mul_i32 s{S_T0}, s{S_WAVE}, {c.RW}")
    e(f"s_add_u32 s{S_T0}, s{S_T0}, s{S_ROW0}")
    if shift:
        e(f"s_lshr_b32 s{S_T1}, s{S_CT}, 1")
        e(f"s_lshl_b32 s{S_T1}, s{S_T1}, 2")
        e(f"s_lshr_b32 s{S_T1}, 0x0413, s{S_T1}")
        e(f"s_and_b32 s{S_T1}, s{S_T1}, 15")
        e(f"s_add_u32 s{S_T0}, s{S_T0}, s{S_T1}")
        e(f"s_sub_u32 s{S_T0}, s{S_T0}, 2")
    e("v_and_b32 v4, 15, v1")
    e(f"v_add_u32 v4, s{S_T0}, v4")
    if shift:
        e(f"v_cmp_gt_u32 vcc, {S}, v4")
    e("v_lshrrev_b32 v5, 4, v4")
    e(f"v_mul_u32_u24 v5, {Kout*32}, v5")
    e("v_and_b32 v4, 15, v4")
    e("v_lshl_add_u32 v5, v4, 4, v5")
    e(f"s_lshl_b32 s{S_T1}, s{S_COL0}, 5")
    e(f"v_add_u32 v5, s{S_T1}, v5")
    e("v_lshrrev_b32 v6, 4, v1")
    e("v_and_b32 v7, 1, v6")
    e("v_lshrrev_b32 v6, 1, v6")
    e("v_lshl_add_u32 v4, v6, 8, v5")
    e(f"v_lshl_add_u32 v{VF4}, v7, 9, v4")
    e(f"v_lshl_add_u32 v{VF2}, v7, 3, v4")
    e(f"v_mov_b32 v{VFB}, v4")
    e(f"v_mov_b32 v{VG1}, v7")
    if shift:
        e("v_bfrev_b32 v7, 1")
        e(f"v_cndmask_b32 v{VF4}, v7, v{VF4}, vcc")
        e(f"v_cndmask_b32 v{VF2}, v7, v{VF2}, vcc")


def fimg_store_pair(e, p, so, off, va=None):
    e("s_nop 1")
    e(f"v_permlane16_swap_b32 v{p}, v{p+2}")
    e(f"v_permlane16_swap_b32 v{p+1}, v{p+3}")
    e(f"buffer_store_dwordx4 {vr(p,4)}, v{va if va else VF4}, {SRD(SRD_C)}, {so} offen offset:{off}{SC}")


def fimg_store_one(e, p, so, off):
    e(f"buffer_store_dwordx2 {vr(p,2)}, v{VF2}, {SRD(SRD_C)}, {so} offen offset:{off}{SC}")


def store_rows(e, c, src, sc=SC):
    for it in range(c.NI):
        e(f"s_waitcnt lgkmcnt({c.NI-1-it})")
        so = soff(e, c, it)
        e(f"buffer_store_dwordx4 {vr(src+4*it,4)}, v{VGO}, {SRD(SRD_C)}, {so} offen{sc}")


def mall_touch(e, items):
    if 'nomall' in OPT: return
    for ptr, nbytes in items:
        sl = nbytes // 256
        srd(e, SRD_P, ptr, 0, nbytes)
        e(f"s_mul_i32 s{S_T0}, s2, {sl}")
        e("v_lshlrev_b32 v4, 7, v0")
        e(f"v_cmp_gt_u32 vcc, {sl}, v4")
        e("v_bfrev_b32 v5, 1")
        e("s_nop 0")
        e("v_cndmask_b32 v4, v5, v4, vcc")
        e(f"buffer_load_dword v15, v4, {SRD(SRD_P)}, s{S_T0} offen")


def t1_consumer(e, t):
    c = t.c
    R = Regs(c, 7)
    SUM, SQ, CS = R.EX, R.EX + 4, R.EX + 8

    def extras(s):
        X, W = R.R[s]
        o = [f"v_mfma_f32_16x16x32_bf16 {vr(SUM,4)}, {vr(R.ONES,4)}, {vr(X,4)}, {vr(SUM,4)}",
             f"v_mfma_f32_16x16x32_bf16 {vr(SQ,4)}, {vr(X,4)}, {vr(X,4)}, {vr(SQ,4)}"]
        for u in range(5):
            o.append(f"v_mfma_f32_16x16x32_bf16 {vr(CS+4*u,4)}, {vr(W+4*u,4)}, {vr(R.ONES,4)}, {vr(CS+4*u,4)}")
        return o

    npk = 2
    V = os.environ.get("VAR", "1")
    if V != "0":
        mall_touch(e, [(P_X, S * 1280), (P_W1, 640 * 1280)])
    pk = lambda e: pack_load(e, [job_small(P_W2, 640, WS_W2I), job_small(P_WO, 640, WS_WOI)], 120, 2)
    if V in ("0", "2"):
        pk(e)
    clayout_off(e, VXO)
    e(f"s_lshl_b32 s{S_T1}, s{S_CT}, 14")
    e(f"v_lshl_add_u32 v{VPA}, v4, 3, s{S_T1}")
    consumer_main(e, c, R, extras, 28, post=lambda e: (mall_touch(e, [(P_WQKV, 640 * 3840)]), pk(e) if V == "1" else None),
                  mid=(int(os.environ.get("MJ", "5")), lambda e: mall_touch(e, [(P_W3, 640 * 3456), (P_W4, F * 1280)])))
    pack_load(e, [job_w3()], 150, 3)
    pack_store(e, npk, 120, 2, wait=3)
    T = R.R[0][0]
    e(f"v_and_b32 v4, 3, v{VJ}")
    e(f"v_cmp_eq_u32 s[{S_M1}:{S_M1+1}], 1, v4")
    e(f"v_cmp_eq_u32 s[{S_M2}:{S_M2+1}], 2, v4")
    e(f"v_cmp_eq_u32 s[{S_M3}:{S_M3+1}], 3, v4")
    e(f"v_lshrrev_b32 v5, 2, v{VJ}")
    e(f"v_cmp_eq_u32 s[{S_M0}:{S_M0+1}], v5, v{VG}")
    gelu_consts(e)
    e(f"v_cndmask_b32 v{SQ}, v{SQ}, v{SQ+1}, s[{S_M1}:{S_M1+1}]")
    e(f"v_cndmask_b32 v{SQ}, v{SQ}, v{SQ+2}, s[{S_M2}:{S_M2+1}]")
    e(f"v_cndmask_b32 v{SQ}, v{SQ}, v{SQ+3}, s[{S_M3}:{S_M3+1}]")
    e(f"v_cndmask_b32 v{SQ}, 0, v{SQ}, s[{S_M0}:{S_M0+1}]")
    xreduce(e, [SQ], T, T + 1)
    ln_from_sums(e, SUM, SQ, SUM + 1, SUM + 2, 4)
    e(f"v_mov_b32 v{SUM+3}, v{SUM+2}")
    D0 = R.R[1][0]
    for tt in range(5):
        ln_gelu_tile(e, R.acc(0, tt), CS + 4 * tt, SUM + 1, SUM + 2, T, D0 + 2 * tt)
        if tt % 2 == 1:
            fimg_store_pair(e, D0 + 2 * tt - 2, "0", (tt - 1) * 512)
    fimg_store_one(e, D0 + 8, "0", 4 * 512)
    lz = e.new("Lz")
    e(f"s_cmp_lg_u32 s{S_WAVE}, 0")
    e(f"s_cbranch_scc1 {lz}")
    e(f"s_cmp_eq_u32 s{S_FNEXT}, 0")
    e(f"s_cselect_b32 s{S_T0}, 1, 0")
    e(f"s_cmp_eq_u32 s{S_FNEXT}, 248")
    e(f"s_cselect_b32 s{S_T0}, 2, s{S_T0}")
    e(f"s_cmp_eq_u32 s{S_T0}, 0")
    e(f"s_cbranch_scc1 {lz}")
    e("v_lshlrev_b32 v4, 8, v1")
    for r in range(4):
        e(f"v_mov_b32 v{T+r}, 0")
    e("s_mov_b64 exec, 0xfffff")
    fo = lambda r, c_: (r >> 4) * 640 * 32 + (r & 15) * 16 + (c_ // 8) * 256
    for (r1, c1), (r2, c2) in (((0, 0), (2047, 160)), ((0, 320), (2046, 480)), ((1, 320), (2047, 480))):
        e(f"s_mov_b32 s{S_T3}, {fo(r2, c2)}")
        e(f"s_cmp_eq_u32 s{S_T0}, 1")
        e(f"s_cselect_b32 s{S_T3}, {fo(r1, c1)}, s{S_T3}")
        e(f"buffer_store_dwordx4 {vr(T,4)}, v4, {SRD(SRD_C)}, s{S_T3} offen{SC}")
    e("s_mov_b64 exec, -1")
    e.label(lz)


def t2_consumer(e, t):
    c = t.c
    R = Regs(c, 0)
    consumer_main(e, c, R, mid=(PUBJ + 2, lambda e: pack_store(e, 3, 150, 3, wait=None)))
    srd(e, SRD_D, P_X, 0, S * 1280)
    for tt in range(5):
        e(f"buffer_load_dwordx2 {vr(VXP+2*tt,2)}, v{VXO}, {SRD(SRD_D)}, 0 offen offset:{tt*32}")
    stage_plain(e, c, R)
    stage_read(e, c, R.ACC)
    store_rows(e, c, R.ACC)


def clayout_off(e, dst):
    e(f"s_lshl_b32 s{S_T0}, s{S_WAVE}, 4")
    e(f"s_add_u32 s{S_T0}, s{S_T0}, s{S_ROW0}")
    e("v_and_b32 v4, 15, v1")
    e(f"v_add_u32 v4, s{S_T0}, v4")
    e("v_lshrrev_b32 v5, 4, v1")
    e(f"s_lshl_b32 s{S_T1}, s{S_COL0}, 1")
    e(f"v_lshl_add_u32 v5, v5, 3, s{S_T1}")
    e(f"s_mov_b32 s{S_T2}, 1280")
    e(f"v_mad_u32_u24 v{dst}, v4, s{S_T2}, v5")


def t3_consumer(e, t):
    c = t.c
    R = Regs(c, 0)
    consumer_main(e, c, R)
    att_preloads(e)
    pack_load(e, [job_small(P_W4, F, WS_W4I)], VPRE, 3)
    T = R.R[0][0]
    D0 = R.R[1][0]
    PS = T + 12
    e(f"v_mov_b32 v{PS}, 0")
    e(f"v_mov_b32 v{PS+1}, 0")
    for tt in range(5):
        a = R.acc(0, tt)
        k = VKX + 2 * tt
        e(f"v_cvt_pk_bf16_f32 v{T+4}, v{a}, v{a+1}")
        e(f"v_cvt_pk_bf16_f32 v{T+5}, v{a+2}, v{a+3}")
        unpack2(e, T, T + 4)
        unpack2(e, T + 2, T + 5)
        unpack2(e, T + 4, VXP + 2 * tt)
        unpack2(e, T + 6, VXP + 2 * tt + 1)
        e(f"v_pk_add_f32 {vr(T,2)}, {vr(T,2)}, {vr(T+4,2)}")
        e(f"v_pk_add_f32 {vr(T+2,2)}, {vr(T+2,2)}, {vr(T+6,2)}")
        e(f"v_cvt_pk_bf16_f32 v{k}, v{T}, v{T+1}")
        e(f"v_cvt_pk_bf16_f32 v{k+1}, v{T+2}, v{T+3}")
        e(f"v_mov_b32 v{D0+2*tt}, v{k}")
        e(f"v_mov_b32 v{D0+2*tt+1}, v{k+1}")
        if tt % 2 == 1:
            fimg_store_pair(e, D0 + 2 * tt - 2, "0", (tt - 1) * 512)
        unpack2(e, T, k)
        unpack2(e, T + 2, k + 1)
        for r in range(4):
            e(f"v_add_f32 v{PS}, v{PS}, v{T+r}")
            e(f"v_fmac_f32 v{PS+1}, v{T+r}, v{T+r}")
    fimg_store_one(e, D0 + 8, "0", 4 * 512)
    xreduce(e, [PS, PS + 1], T, T + 1)
    e("s_mov_b64 exec, 0xffff")
    e(f"buffer_store_dwordx2 {vr(PS,2)}, v{VPA}, {SRD(SRD_F)}, 0 offen{SC}")
    e("s_mov_b64 exec, -1")


def t5_consumer(e, t):
    c = t.c
    R = Regs(c, 2)
    CS, PR = R.EX, VPRE

    def extras(s):
        X, W = R.R[s]
        return [f"v_mfma_f32_16x16x32_bf16 {vr(CS+4*u,4)}, {vr(W+4*u,4)}, {vr(R.ONES,4)}, {vr(CS+4*u,4)}" for u in range(2)]

    def post(e):
        e(f"s_lshl_b32 s{S_T2}, s{S_WAVE}, 5")
        e(f"s_add_u32 s{S_T2}, s{S_T2}, s{S_ROW0}")
        e(f"v_add_u32 v4, s{S_T2}, v{VJ}")
        e("v_lshlrev_b32 v4, 3, v4")
        e(f"v_lshl_add_u32 v4, v{VG}, 15, v4")
        e(f"s_mov_b32 s{S_T2}, 16384")
        for i in range(2):
            e(f"buffer_load_dwordx2 {vr(PR+4*i,2)}, v4, {SRD(SRD_F)}, 0 offen offset:{i*128}{SC}")
            e(f"buffer_load_dwordx2 {vr(PR+4*i+2,2)}, v4, {SRD(SRD_F)}, s{S_T2} offen offset:{i*128}{SC}")

    consumer_main(e, c, R, extras, 8, mid=(PUBJ + 1, post))
    T = R.R[0][0]
    CSR = R.R[1][0]
    e(f"v_cmp_eq_u32 s[{S_M0}:{S_M0+1}], 0, v{VJ}")
    for u in range(2):
        gtile(e, c, u, S_T2)
        e(f"s_lshl_b32 s{S_T2}, s{S_T2}, 6")
        e(f"s_add_u32 s{S_T2}, s{S_T2}, {c.STG}")
        e(f"v_lshl_add_u32 v{4+u}, v{VG}, 4, s{S_T2}")
    e(f"s_mov_b64 exec, s[{S_M0}:{S_M0+1}]")
    for u in range(2):
        e(f"ds_write_b128 v{4+u}, {vr(CS+4*u,4)}")
    e("s_mov_b64 exec, -1")
    e("s_waitcnt lgkmcnt(0)")
    e("s_barrier")
    for tt in range(c.nt):
        gtile(e, c, tt, S_T2)
        e(f"s_lshl_b32 s{S_T2}, s{S_T2}, 6")
        e(f"s_add_u32 s{S_T2}, s{S_T2}, {c.STG}")
        e(f"v_lshl_add_u32 v4, v{VG}, 4, s{S_T2}")
        e(f"ds_read_b128 {vr(CSR+4*tt,4)}, v4")
    gelu_consts(e)
    e("s_waitcnt vmcnt(0)")
    for i in range(2):
        e(f"v_add_f32 v{PR+4*i}, v{PR+4*i}, v{PR+4*i+2}")
        e(f"v_add_f32 v{PR+4*i+1}, v{PR+4*i+1}, v{PR+4*i+3}")
    xreduce(e, [PR, PR + 1, PR + 4, PR + 5], T, T + 1)
    for i in range(2):
        ln_from_sums(e, PR + 4 * i, PR + 4 * i + 1, PR + 8 + i, PR + 4 * i + 2, 4)
        e(f"v_mov_b32 v{PR+4*i+3}, v{PR+4*i+2}")
    e("s_waitcnt lgkmcnt(0)")
    k = 0
    for tp in range(0, 7, 2):
        gtile(e, c, tp, S_T0)
        e(f"s_lshl_b32 s{S_T0}, s{S_T0}, 9")
        if tp < 6:
            gtile(e, c, tp + 1, S_T1)
            e(f"s_lshl_b32 s{S_T1}, s{S_T1}, 9")
            e(f"s_sub_u32 s{S_T1}, s{S_T1}, s{S_T0}")
            e(f"v_mad_i32_i24 v{VF4}, v{VG1}, s{S_T1}, v{VFB}")
            e(f"v_add_u32 v{VF4}, s{S_T0}, v{VF4}")
            e(f"s_mov_b32 s{S_T0}, 0")
        e(f"s_add_u32 s{S_T1}, s{S_T0}, {F*32}")
        for i in range(2):
            p = T + 8 + 4 * (k % 4); k += 1
            ln_gelu_tile(e, R.acc(i, tp), CSR + 4 * tp, PR + 8 + i, PR + 4 * i + 2, T, p)
            so = f"s{S_T1}" if i else f"s{S_T0}"
            if tp < 6:
                ln_gelu_tile(e, R.acc(i, tp + 1), CSR + 4 * (tp + 1), PR + 8 + i, PR + 4 * i + 2, T, p + 2)
                fimg_store_pair(e, p, so, 0)
            else:
                fimg_store_one(e, p, so, 0)


def t6_consumer(e, t):
    c = t.c
    R = Regs(c, 0)

    def post(e):
        e(f"v_lshlrev_b32 v4, 2, v{VJ}")
        e(f"s_lshl_b32 s{S_T0}, s{S_WAVE}, 4")
        e(f"s_add_u32 s{S_T0}, s{S_T0}, s{S_ROW0}")
        e(f"s_lshl_b32 s{S_T0}, s{S_T0}, 2")
        e(f"buffer_load_dword v{VGT}, v4, {SRD(SRD_F)}, s{S_T0} offen{SC}")

    consumer_main(e, c, R, mid=(PUBJ + 1, post))
    for tt in range(5):
        a = R.acc(0, tt)
        e(f"v_cvt_pk_bf16_f32 v{VKA+2*tt}, v{a}, v{a+1}")
        e(f"v_cvt_pk_bf16_f32 v{VKA+2*tt+1}, v{a+2}, v{a+3}")


def t7_consumer(e, t):
    c = t.c
    R = Regs(c, 0)
    consumer_main(e, c, R)
    T = R.R[0][0]
    OMG, G2 = T + 12, T + 14
    e("s_waitcnt vmcnt(0)")
    e(f"v_sub_f32 v{OMG}, 1.0, v{VGT}")
    bf16r(e, OMG, OMG)
    e(f"v_mov_b32 v{OMG+1}, v{OMG}")
    e(f"v_mov_b32 v{G2}, v{VGT}")
    e(f"v_mov_b32 v{G2+1}, v{VGT}")

    def rnd4(a):
        e(f"v_cvt_pk_bf16_f32 v{T+8}, v{a}, v{a+1}")
        e(f"v_cvt_pk_bf16_f32 v{T+9}, v{a+2}, v{a+3}")
        unpack2(e, a, T + 8)
        unpack2(e, a + 2, T + 9)

    def pk(op, d, a, b, bs=2):
        e(f"{op} {vr(d,2)}, {vr(a,2)}, {vr(b,2)}")
        e(f"{op} {vr(d+2,2)}, {vr(a+2,2)}, {vr(b+bs,2)}")

    for tt in range(5):
        a = R.acc(0, tt)
        p = T + 16 + 2 * (tt % 4)
        rnd4(a)
        unpack2(e, T, VKX + 2 * tt)
        unpack2(e, T + 2, VKX + 2 * tt + 1)
        pk("v_pk_add_f32", a, a, T)
        rnd4(a)
        pk("v_pk_mul_f32", a, a, OMG, 0)
        rnd4(a)
        unpack2(e, T, VKA + 2 * tt)
        unpack2(e, T + 2, VKA + 2 * tt + 1)
        pk("v_pk_mul_f32", T, T, G2, 0)
        rnd4(T)
        pk("v_pk_add_f32", a, a, T)
        e(f"v_cvt_pk_bf16_f32 v{p}, v{a}, v{a+1}")
        e(f"v_cvt_pk_bf16_f32 v{p+1}, v{a+2}, v{a+3}")
        stage_write(e, c, 0, tt, p)
    D0 = R.R[1][0]
    stage_read(e, c, D0)
    store_rows(e, c, D0, "")


ATT_N = 83


def att_decode(e):
    decode_small(e)
    e(f"s_lshl_b32 s{S_T0}, s{S_CT}, 3")
    e(f"s_add_u32 s{S_ROW0}, s{S_ROW0}, s{S_T0}")
    e(f"s_add_u32 s{S_FNEXT}, s{S_FNEXT}, 768")


def deps_a(e):
    e(f"s_sub_u32 s{S_T0}, s{S_ROW0}, 14")
    e(f"s_max_i32 s{S_T0}, s{S_T0}, 0")
    e(f"s_lshr_b32 s{S_T0}, s{S_T0}, 7")
    e(f"s_lshr_b32 s{S_T1}, s{S_ROW0}, 7")
    e(f"s_sub_u32 s{S_T1}, s{S_T1}, s{S_T0}")
    e("v_bfe_u32 v4, v1, 4, 1")
    e(f"v_mul_u32_u24 v4, s{S_T1}, v4")
    e(f"v_add_u32 v4, s{S_T0}, v4")
    e("v_and_b32 v5, 15, v1")
    e("v_lshl_add_u32 v4, v4, 4, v5")
    e("v_add_u32 v4, 0x100, v4")


def att_loader_setup(e):
    e(f"s_sub_u32 s{S_T0}, s{S_ROW0}, 14")
    e(f"s_mul_i32 s{S_T0}, s{S_T0}, 3840")
    e(f"s_lshl_b32 s{S_MA}, s{S_WL}, 10")
    e(f"s_add_u32 s{S_T0}, s{S_T0}, s{S_MA}")
    e(f"v_lshl_add_u32 v{LVA}, v1, 4, s{S_T0}")
    e(f"v_bfrev_b32 v{LVA+1}, 1")
    srd(e, SRD_A, P_WS, WS_QKV, S * 3840)


def att_issue(e, k):
    lp = e.new("Lai")
    e(f"s_mov_b32 s{S_CNT}, {k}")
    e.label(lp)
    e(f"v_cmp_gt_i32 vcc, 0, v{LVA}")
    e(f"s_mov_b32 m0, s{S_MA}")
    e(f"s_add_u32 s{S_MA}, s{S_MA}, 0x1000")
    e(f"v_cndmask_b32 v3, v{LVA}, v{LVA+1}, vcc")
    e(f"buffer_load_dwordx4 v3, {SRD(SRD_A)}, 0 offen{SC} lds")
    e(f"v_add_u32 v{LVA}, 0x1000, v{LVA}")
    e(f"s_sub_u32 s{S_CNT}, s{S_CNT}, 1")
    e(f"s_cmp_lg_u32 s{S_CNT}, 0")
    e(f"s_cbranch_scc1 {lp}")


GX, GWR = 150, 160


def att_preloads(e):
    srd(e, SRD_E, P_GW, 0, 1280)
    e(f"s_lshl_b32 s{S_T0}, s{S_CT}, 3")
    e(f"s_add_u32 s{S_T0}, s{S_T0}, s{S_ROW0}")
    e("v_lshrrev_b32 v4, 5, v0")
    e("v_and_b32 v5, 31, v0")
    e("v_mul_u32_u24 v6, 40, v5")
    e(f"v_add_u32 v4, s{S_T0}, v4")
    e(f"s_mov_b32 s{S_T2}, 1280")
    e(f"v_mad_u32_u24 v5, v4, s{S_T2}, v6")
    e(f"buffer_load_dwordx4 {vr(GX,4)}, v5, {SRD(SRD_D)}, 0 offen")
    e(f"buffer_load_dwordx4 {vr(GX+4,4)}, v5, {SRD(SRD_D)}, 0 offen offset:16")
    e(f"buffer_load_dwordx2 {vr(GX+8,2)}, v5, {SRD(SRD_D)}, 0 offen offset:32")
    e(f"buffer_load_dwordx4 {vr(GWR,4)}, v6, {SRD(SRD_E)}, 0 offen")
    e(f"buffer_load_dwordx4 {vr(GWR+4,4)}, v6, {SRD(SRD_E)}, 0 offen offset:16")
    e(f"buffer_load_dwordx2 {vr(GWR+8,2)}, v6, {SRD(SRD_E)}, 0 offen offset:32")


def attention(e):
    stamp(e, 0)
    e("s_barrier")
    att_decode(e)
    srd(e, SRD_C, P_WS, WS_O, S * 1280)
    srd(e, SRD_F, P_WS, WS_G, S * 4)
    e("v_lshrrev_b32 v4, 5, v0")
    e("v_and_b32 v14, 31, v0")
    e("v_mul_u32_u24 v6, 40, v14")
    e("v_mul_u32_u24 v8, 3840, v4")
    e("v_add_u32 v8, v8, v6")
    e(f"v_add_u32 v9, s{S_ROW0}, v4")
    stamp(e, 1)
    e("s_waitcnt vmcnt(0)")
    e("s_barrier")
    stamp(e, 2)
    Q, KK, LG = 16, 32, 112
    for d in range(5):
        e(f"ds_read_b64 {vr(Q+2*d,2)}, v8 offset:{14*3840 + 8*d}")
    for d in range(10):
        e(f"ds_read_b64 {vr(KK+2*d,2)}, v8 offset:{(14-2*(d//5))*3840 + 1280 + 8*(d%5)}")
    GS = 170
    e(f"v_mov_b32 v{GS}, 0")
    for d in range(10):
        unpack2(e, GS + 1, GX + d)
        unpack2(e, GS + 3, GWR + d)
        e(f"v_mul_f32 v{GS+1}, v{GS+1}, v{GS+3}")
        e(f"v_mul_f32 v{GS+2}, v{GS+2}, v{GS+4}")
        e(f"v_cvt_pk_bf16_f32 v{GS+1}, v{GS+1}, v{GS+2}")
        unpack2(e, GS + 2, GS + 1)
        e(f"v_add_f32 v{GS}, v{GS}, v{GS+2}")
        e(f"v_add_f32 v{GS}, v{GS}, v{GS+3}")
    for sh in (8, 4, 2, 1):
        e("s_nop 1")
        e(f"v_add_f32_dpp v{GS}, v{GS}, v{GS} row_ror:{sh} row_mask:0xf bank_mask:0xf")
    e(f"v_mov_b32 v{GS+1}, v{GS}")
    e(f"v_mov_b32 v{GS+2}, v{GS}")
    e("s_nop 1")
    e(f"v_permlane16_swap_b32 v{GS+1}, v{GS+2}")
    e("s_nop 0")
    e(f"v_add_f32 v{GS}, v{GS+1}, v{GS+2}")
    bf16r(e, GS, GS)
    e(f"v_mul_f32 v{GS}, {hex(f32bits(-1.4426950408889634))}, v{GS}")
    e(f"v_exp_f32 v{GS}, v{GS}")
    e("s_nop 0")
    e(f"v_add_f32 v{GS}, 1.0, v{GS}")
    e(f"v_rcp_f32 v{GS}, v{GS}")
    e("s_nop 0")
    bf16r(e, GS, GS)
    for w in range(8):
        if w % 2 == 0:
            e("s_waitcnt lgkmcnt(0)")
            if w < 6:
                for d in range(10):
                    ww = w + 2 + d // 5
                    e(f"ds_read_b64 {vr(KK+10*ww+2*(d%5),2)}, v8 offset:{(14-2*ww)*3840 + 1280 + 8*(d%5)}")
        e(f"v_mov_b32 v{LG+w}, 0")
        for d in range(10):
            e(f"v_dot2_f32_bf16 v{LG+w}, v{Q+d}, v{KK+10*w+d}, v{LG+w}")
    e.nop(4)
    vreads = []
    for w in range(8):
        for d in range(5):
            vreads.append(f"ds_read_b64 {vr(KK+10*w+2*d,2)}, v8 offset:{(14-2*w)*3840 + 2560 + 8*d}")
    for r in vreads[:15]:
        e(r)
    e(f"s_mov_b32 s{S_K0}, {hex(f32bits(20 ** -0.5))}")
    e(f"v_mov_b32 v10, {hex(f32bits(-1e9) & 0xffff0000)}")
    for w in range(8):
        bf16r(e, LG + w, LG + w)
        e(f"v_mul_f32 v{LG+w}, s{S_K0}, v{LG+w}")
        bf16r(e, LG + w, LG + w)
        if w:
            e(f"v_cmp_gt_u32 vcc, {2*w}, v9")
            e("s_nop 1")
            e(f"v_cndmask_b32 v{LG+w}, v{LG+w}, v10, vcc")
    e(f"v_max3_f32 v11, v{LG}, v{LG+1}, v{LG+2}")
    e(f"v_max3_f32 v11, v11, v{LG+3}, v{LG+4}")
    e(f"v_max3_f32 v11, v11, v{LG+5}, v{LG+6}")
    e(f"v_max_f32 v11, v11, v{LG+7}")
    e(f"s_mov_b32 s{S_K1}, {hex(f32bits(1.4426950408889634))}")
    for w in range(8):
        e(f"v_sub_f32 v{LG+w}, v{LG+w}, v11")
        e(f"v_mul_f32 v{LG+w}, s{S_K1}, v{LG+w}")
        e(f"v_exp_f32 v{LG+w}, v{LG+w}")
    e("s_waitcnt lgkmcnt(0)")
    for r in vreads[15:30]:
        e(r)
    e(f"v_add_f32 v12, v{LG}, v{LG+1}")
    for w in range(2, 8):
        e(f"v_add_f32 v12, v12, v{LG+w}")
    e("v_rcp_f32 v12, v12")
    e("s_nop 0")
    for w in range(8):
        e(f"v_mul_f32 v{LG+w}, v{LG+w}, v12")
    PP = 120
    for w in range(4):
        e(f"v_cvt_pk_bf16_f32 v{PP+w}, v{LG+2*w}, v{LG+2*w+1}")
    e("s_waitcnt lgkmcnt(0)")
    for r in vreads[30:]:
        e(r)
    e(f"s_mov_b32 s{S_K2}, 0x05040100")
    e(f"s_mov_b32 s{S_K3}, 0x07060302")
    O = 124
    for r in range(20):
        e(f"v_mov_b32 v{O+r}, 0")
    for wp in range(4):
        if wp == 3:
            e("s_waitcnt lgkmcnt(0)")
            stamp(e, 3)
        a, b = KK + 10 * (2 * wp), KK + 10 * (2 * wp + 1)
        for d in range(10):
            e(f"v_perm_b32 v{Q+(d%2)*2}, v{b+d}, v{a+d}, s{S_K2}")
            e(f"v_perm_b32 v{Q+(d%2)*2+1}, v{b+d}, v{a+d}, s{S_K3}")
            e(f"v_dot2_f32_bf16 v{O+2*d}, v{Q+(d%2)*2}, v{PP+wp}, v{O+2*d}")
            e(f"v_dot2_f32_bf16 v{O+2*d+1}, v{Q+(d%2)*2+1}, v{PP+wp}, v{O+2*d+1}")
    e.nop(4)
    for d in range(10):
        e(f"v_cvt_pk_bf16_f32 v{KK+d}, v{O+2*d}, v{O+2*d+1}")
    e("v_lshrrev_b32 v4, 5, v0")
    e("v_mul_u32_u24 v4, 1296, v4")
    e(f"v_add3_u32 v4, v4, v6, {0}")
    e(f"v_add_u32 v4, {84*1024}, v4")
    for d in range(5):
        e(f"ds_write_b64 v4, {vr(KK+2*d,2)} offset:{8*d}")
    e("v_and_b32 v6, 7, v0")
    e("v_lshrrev_b32 v7, 3, v0")
    e("v_mul_u32_u24 v5, 1296, v6")
    e("v_lshl_add_u32 v5, v7, 4, v5")
    e(f"v_add_u32 v5, {84*1024}, v5")
    e("v_lshlrev_b32 v6, 4, v6")
    e("v_lshl_add_u32 v6, v7, 8, v6")
    e(f"s_lshr_b32 s{S_T2}, s{S_ROW0}, 4")
    e(f"s_mul_i32 s{S_T2}, s{S_T2}, 20480")
    e(f"s_and_b32 s{S_T1}, s{S_ROW0}, 15")
    e(f"s_lshl_b32 s{S_T1}, s{S_T1}, 4")
    e(f"s_add_u32 s{S_T1}, s{S_T1}, s{S_T2}")
    e("s_waitcnt lgkmcnt(0)")
    e("s_barrier")
    for i in range(3):
        e(f"ds_read_b128 {vr(Q+4*i,4)}, v5 offset:{512*i}")
    lsk = e.new("Lsk")
    for i in range(3):
        e(f"s_waitcnt lgkmcnt({2-i})")
        if i == 2:
            e(f"s_cmp_ge_u32 s{S_WAVE}, 2")
            e(f"s_cbranch_scc1 {lsk}")
        e(f"buffer_store_dwordx4 {vr(Q+4*i,4)}, v6, {SRD(SRD_C)}, s{S_T1} offen{SC}")
        e(f"s_add_u32 s{S_T1}, s{S_T1}, 8192")
    e.label(lsk)
    pack_store(e, 3, VPRE, 3, wait=None)
    e(f"v_lshlrev_b32 v{GS+1}, 2, v9")
    e("v_cmp_eq_u32 vcc, 0, v14")
    e("s_nop 1")
    e("s_mov_b64 exec, vcc")
    e(f"buffer_store_dword v{GS}, v{GS+1}, {SRD(SRD_F)}, 0 offen{SC}")
    e("s_mov_b64 exec, -1")
    stamp(e, 4)
    stamp_flush(e, 5)


def main():
    e = E()
    T = build_tasks()
    name = NAME + "_kernel"
    e.L += [f".globl {name}", ".p2align 8", f".type {name},@function"]
    e.label(name)
    e("s_cmp_ge_u32 s2, 256")
    e("s_cbranch_scc1 Lend")
    e("s_load_dwordx16 s[16:31], s[0:1], 0")
    e("s_load_dwordx8 s[32:39], s[0:1], 64")
    e("v_lshrrev_b32 v1, 6, v0")
    e(f"s_and_b32 s{S_XCD}, s2, 7")
    e(f"v_readfirstlane_b32 s{S_WAVE}, v1")
    e(f"s_lshr_b32 s{S_SLOT}, s2, 3")
    e("v_and_b32 v1, 63, v0")
    e(f"s_sub_u32 s{S_WL}, s{S_WAVE}, 4")
    e("v_mov_b32 v14, 0")
    l = e.new("Ltg")
    e("s_cmp_lg_u32 s2, 0")
    e(f"s_cbranch_scc1 {l}")
    e(f"s_cmp_lg_u32 s{S_WAVE}, 3")
    e(f"s_cbranch_scc1 {l}")
    e("s_memrealtime s[4:5]")
    e("s_waitcnt lgkmcnt(0)")
    srd(e, SRD_P, P_DBG, 0, 256)
    e("s_or_b32 s4, s4, 1")
    e("v_mov_b32 v4, 0")
    e("v_mov_b32 v6, s4")
    e("v_mov_b32 v7, s5")
    e("s_mov_b64 exec, 1")
    e(f"buffer_store_dwordx2 v[6:7], v4, {SRD(SRD_P)}, 0 offen sc1")
    e("s_mov_b64 exec, -1")
    e.label(l)
    e(f"s_cmp_ge_u32 s{S_WAVE}, 4")
    e("s_cbranch_scc1 Lcold_L1")

    order = [1, 2, 3, 5, 6, 7]
    cons = {1: t1_consumer, 2: t2_consumer, 3: t3_consumer, 5: t5_consumer, 6: t6_consumer, 7: t7_consumer}
    pub_in = {2, 3, 5, 6}

    for k in order:
        t = T[k]
        TASK[0] = k - 1
        stamp(e, 0)
        t.decode(e)
        if k == 1:
            e("s_waitcnt lgkmcnt(0)")
        t.srd_c(e)
        if k in (2, 7):
            store_addrs(e, t.c, False)
        elif k != 6:
            fimg_addrs(e, t.c, F if k == 5 else 640, k == 1)
        PUB[0] = k in pub_in
        cons[k](e, t)
        stamp(e, 4)
        stamp_flush(e, 5)
        if k == 7:
            e("s_endpgm")
        if k == 3:
            TASK[0] = 3
            attention(e)
    e.label("Lcold_L1")
    t = T[1]
    t.decode(e)
    loader_setup(e, t.c)
    e("s_waitcnt lgkmcnt(0)")
    t.srd_ab(e)
    issue_n(e, t.c, t.asc, t.c.P)
    E_ = t.c.P

    def rot_flags(e):
        e(f"s_mov_b32 s{S_FPREV}, s{S_FIDX}")
        e(f"s_mov_b32 s{S_FIDX}, s{S_FNEXT}")

    for idx, k in enumerate(order):
        t = T[k]
        nk = order[idx + 1] if idx + 1 < len(order) else None
        rot_flags(e)
        busy = [t.c.LAST, (t.c.STG, t.c.STGEND)]
        if k == 3:
            def hook(e):
                att_decode(e)
                att_loader_setup(e)
                poll_issue(e, deps_a)
                return 0
            loader_main(e, t.c, t.asc, E_, True, hook)
            poll_check(e, 120 * 1024, 0x40)
            att_issue(e, 20)
            e("s_barrier")
            att_issue(e, 1)
            rot_flags(e)
            n_t = T[5]
            n_t.decode(e)
            loader_setup(e, n_t.c)
            n_t.srd_ab(e)
            e("s_waitcnt vmcnt(0)")
            e("s_barrier")
            stamp(e, 0)
            store_flag(e)
            stamp(e, 1)
            poll_issue(e, n_t.deps)
            poll_check(e, 95 * 1024, 0x50)
            stamp(e, 2)
            if 'stamp' in OPT: e(f"s_mov_b32 s12, s{S_CNT}")
            E_ = n_early([(0, 96 * 1024)], n_t.c)
            touch_task(e, n_t)
            issue_n(e, n_t.c, n_t.asc, E_)
            stamp(e, 3)
            TASK[0] = 7
            stamp_flush(e, 5, int(os.environ.get("LW", "4")))
            e("s_barrier")
            continue
        hook = None
        if nk:
            n_t = T[nk]

            def hook(e, n_t=n_t):
                n_t.decode(e)
                loader_setup(e, n_t.c)
                n_t.srd_ab(e)
                if n_t.deps:
                    poll_issue(e, n_t.deps)
                return 0
        loader_main(e, t.c, t.asc, E_, k in pub_in, hook)
        if not nk:
            e("s_endpgm")
            continue
        if k == 5:
            e("s_barrier")
        if n_t.deps:
            poll_check(e, {3: 84, 6: 62, 7: 120}[nk] * 1024, nk * 16)
        E_ = n_early(busy, n_t.c)
        touch_task(e, n_t)
        issue_n(e, n_t.c, n_t.asc, E_)
        if k == 1:
            fetch_tag(e)
    e.label("Lend")
    e("s_endpgm")

    head = open("cdna_kernels/" + NAME + ".s.ref").read().split("; Override launch")[0]
    out = head
    out += f"; WS qkv {WS_QKV} 2048 1920\n"
    out += "; @launch grid=(256,1,1) block=(512,1,1) lds=163840\n"
    out += '.amdgcn_target "amdgcn-amd-amdhsa--gfx950"\n.text\n'
    out += "\n".join(e.L) + "\n"
    out += '.section .rodata,"a"\n'
    out += f""".p2align 6
.amdhsa_kernel {name}
  .amdhsa_next_free_vgpr {NVGPR}
  .amdhsa_next_free_sgpr 102
  .amdhsa_accum_offset 256
  .amdhsa_group_segment_fixed_size 0
  .amdhsa_kernarg_size 96
  .amdhsa_user_sgpr_count 2
  .amdhsa_user_sgpr_kernarg_segment_ptr 1
  .amdhsa_system_sgpr_workgroup_id_x 1
.end_amdhsa_kernel
"""
    path = sys.argv[1] if len(sys.argv) > 1 else "cdna_kernels/" + NAME + ".s"
    open(path, "w").write(out)
    print("wrote", path, len(e.L), "lines")


main()
```

```python
import sys, struct, os
OPT = set(os.environ.get('OPT', '').split(','))

NAME = "gated_mix__sliding_local_dilated__mixer_s_mlp__prompt"
S, D, F = 2048, 640, 1728

WS_QKV = 0
WS_HS = 0x800000 + 0x1000
WS_O = 0xB00000
WS_X1 = 0xE00000
WS_H3 = 0x1400000
WS_PART = 0x1C00000
WS_G = 0x1D00000
WS_FLAG = 0x1E00000
WS_STAMP = 0x1F00000
WS_W2I = 0x2000000
WS_WOI = 0x2100000
WS_W3I = 0x2200000
WS_W4I = 0x2500000
NFLAG = 10 * 256
SC = " sc1"


def f32bits(x):
    return struct.unpack("<I", struct.pack("<f", x))[0]


class E:
    def __init__(self):
        self.L = []
        self.n = 0

    def __call__(self, s):
        self.L.append("    " + s)

    def label(self, l):
        self.L.append(l + ":")

    def new(self, p="L"):
        self.n += 1
        return f"{p}_{self.n}"

    def nop(self, n):
        while n > 0:
            k = min(n, 16)
            self(f"s_nop {k-1}")
            n -= k

    def c(self, s):
        self.L.append("    ; " + s)


def vr(a, n=1):
    return f"v{a}" if n == 1 else f"v[{a}:{a+n-1}]"


P_X, P_WQKV, P_WO, P_BX, P_W1, P_W2, P_W3, P_W4 = 16, 18, 20, 22, 24, 26, 28, 30
P_GW, P_OUT, P_DBG, P_WS = 32, 34, 36, 38
SRD_A, SRD_B, SRD_C, SRD_D, SRD_E, SRD_F = 40, 44, 48, 52, 56, 60
S_ROW0, S_COL0, S_WAVE, S_KA, S_KB, S_BUF, S_CNT = 64, 65, 66, 67, 68, 69, 70
S_T0, S_T1, S_T2, S_T3 = 71, 72, 73, 74
S_MA, S_MB, S_RB, S_CT, S_WL = 75, 76, 77, 78, 79
S_M0, S_M1, S_M2, S_M3 = 80, 82, 84, 86
S_K0, S_K1, S_K2, S_K3 = 88, 89, 90, 91
SRD_P = 92
S_XCD, S_SLOT = 96, 97
S_TAG = 98
S_FIDX, S_FNEXT, S_FPREV = 15, 14, 7
SRD = lambda d: f"s[{d}:{d+3}]"

VJ, VG = 2, 3
VA0, VA1 = 8, 9
VSTG, VK0 = 12, 13
LVA, LVB = 176, 184
VPRE = 176
VKX, VKA, VGT = 200, 210, 220
VXP = 222
VPA = 221
VXO = 199
VL, VGO = 232, 233
VBT = 244
NVGPR = 253
TASK = [0]
PUB = [False]


def srd(e, d, ptr, off, nbytes):
    if off:
        e(f"s_add_u32 s{d}, s{ptr}, {off}")
        e(f"s_addc_u32 s{d+1}, s{ptr+1}, 0")
    else:
        e(f"s_mov_b32 s{d}, s{ptr}")
        e(f"s_mov_b32 s{d+1}, s{ptr+1}")
    e(f"s_mov_b32 s{d+2}, {nbytes}")
    e(f"s_mov_b32 s{d+3}, 0x00020000")


def stamp(e, idx):
    if 'stamp' not in OPT: return
    e("s_memtime s[100:101]")
    e("s_waitcnt lgkmcnt(0)")
    e(f"s_mov_b32 s{8+idx}, s100")


def stamp_flush(e, n, wave=0):
    if 'stamp' not in OPT: return
    stamp(e, n)
    l = e.new("Lst")
    e(f"s_cmp_lg_u32 s{S_WAVE}, {wave}")
    e(f"s_cbranch_scc1 {l}")
    srd(e, SRD_P, P_WS, WS_STAMP, 256 * 256)
    e("s_lshl_b32 s100, s2, 8")
    e("s_mov_b64 exec, 1")
    e("v_mov_b32 v4, s100")
    for i in range(n + 1):
        e(f"v_mov_b32 v5, s{8+i}")
        e(f"buffer_store_dword v5, v4, {SRD(SRD_P)}, 0 offen offset:{32*TASK[0] + 4*i}")
    e("s_mov_b64 exec, -1")
    e.label(l)


class Cfg:
    def __init__(self, Tm, Tn, K, SB, NBUF, WM, WN, lda, ldb, ldc, STGBASE, s0=0, packed=False, fimg=False, rot=0):
        self.s0 = s0
        self.fimg = fimg
        self.rot = rot
        self.packed = packed
        self.PSB = Tn * 2
        self.BSTEP = 64 * self.PSB
        self.Tm, self.Tn, self.K, self.SB, self.NBUF, self.WM, self.WN = Tm, Tn, K, SB, NBUF, WM, WN
        self.WK = 1
        assert WM * WN == 4
        self.swz = {320: [(3, 0)], 192: [(3, 0)], 384: [(1, 0), (3, 1)], 256: [(0, 0), (1, 1), (3, 2)]}[SB]
        self.lda, self.ldb, self.ldc = lda, ldb, ldc
        self.NS = K // 64
        self.NT = Tn // 16
        self.mt = Tm // 16 // WM
        self.nt = self.NT // WN
        self.ABYTES = Tm * 128
        self.BUFSZ = self.ABYTES + 64 * SB
        self.nAw = Tm // 8 // 4
        self.nBw = SB // 16 // 4
        self.n = self.nAw + self.nBw
        self.CPR = SB // 16
        self.P = NBUF - 1
        assert NBUF * self.BUFSZ <= 163840
        self.RS = self.nt * 32 + 16
        self.CPO = self.nt * 2
        self.LPR = 8 if self.CPO <= 8 else 16
        self.RPI = 64 // self.LPR
        self.RW = self.mt * 16
        self.NI = self.RW // self.RPI
        self.WSTG = self.RW * self.RS
        self.STG = STGBASE
        self.STGEND = STGBASE + 4 * self.WSTG
        assert self.STGEND <= 163840
        last = (s0 + self.NS - 1) % NBUF
        self.LAST = (last * self.BUFSZ, (last + 1) * self.BUFSZ)
        assert self.STGEND <= self.LAST[0] or self.STG >= self.LAST[1]


def overlaps(a, b):
    return a[0] < b[1] and b[0] < a[1]


def n_early(busy, nxt):
    early = 0
    for j in range(nxt.P):
        jj = (nxt.s0 + j) % nxt.NBUF
        sl = (jj * nxt.BUFSZ, (jj + 1) * nxt.BUFSZ)
        if any(overlaps(sl, b) for b in busy):
            break
        early += 1
    return early


def bf16r(e, d, s):
    e(f"v_cvt_pk_bf16_f32 v{d}, v{s}, v{s}")
    e(f"v_lshlrev_b32 v{d}, 16, v{d}")


def unpack2(e, d, s):
    e(f"v_lshlrev_b32 v{d}, 16, v{s}")
    e(f"v_and_b32 v{d+1}, 0xffff0000, v{s}")


def store_addrs(e, c, shift=False):
    wmwn(e, c)
    sh = 3 if c.LPR == 8 else 4
    e(f"s_mul_i32 s{S_T2}, s{S_T0}, {c.RW}")
    e(f"s_add_u32 s{S_T2}, s{S_T2}, s{S_ROW0}")
    e(f"s_mul_i32 s{S_T2}, s{S_T2}, {c.ldc}")
    e(f"s_mul_i32 s{S_T3}, s{S_T1}, {c.nt*16}")
    e(f"s_add_u32 s{S_T3}, s{S_T3}, s{S_COL0}")
    e(f"s_lshl_b32 s{S_T1}, s{S_T3}, 1")
    e(f"s_add_u32 s{S_T2}, s{S_T2}, s{S_T1}")
    e(f"s_mul_i32 s{S_T0}, s{S_WAVE}, {c.WSTG}")
    e(f"s_add_u32 s{S_T0}, s{S_T0}, {c.STG}")
    e(f"s_mov_b32 s{S_T1}, {c.ldc}")
    e(f"v_lshrrev_b32 v5, {sh}, v1")
    e(f"v_and_b32 v6, {c.LPR-1}, v1")
    e(f"v_mul_u32_u24 v7, {c.RS}, v5")
    e("v_lshl_add_u32 v7, v6, 4, v7")
    e(f"v_add_u32 v{VL}, s{S_T0}, v7")
    if shift:
        e(f"s_mov_b32 s{S_K2}, 0x0413")
        e(f"v_lshl_add_u32 v7, v6, 3, s{S_T3}")
        e("v_mul_u32_u24 v7, 410, v7")
        e("v_lshrrev_b32 v7, 16, v7")
        e("v_lshlrev_b32 v7, 2, v7")
        e(f"v_bfe_u32 v7, s{S_K2}, v7, 4")
        e("v_add_u32 v5, v5, v7")
    if c.CPO < c.LPR:
        e(f"v_cmp_gt_u32 vcc, {c.CPO}, v6")
    e("v_lshlrev_b32 v6, 4, v6")
    e(f"v_mad_u32_u24 v7, v5, s{S_T1}, v6")
    e(f"v_add_u32 v{VGO}, s{S_T2}, v7")
    if c.CPO < c.LPR:
        e("v_bfrev_b32 v7, 1")
        e(f"v_cndmask_b32 v{VGO}, v7, v{VGO}, vcc")


def soff(e, c, it):
    if it == 0:
        return "0"
    e(f"s_mov_b32 s{S_K0}, {it*c.RPI*c.ldc}")
    return f"s{S_K0}"


def poll(e, addr_fn):
    addr_fn(e)
    e("v_lshlrev_b32 v4, 3, v4")
    srd(e, SRD_P, P_WS, WS_FLAG, NFLAG * 8)
    lp, l = e.new("Lpoll"), e.new("Lpx")
    e(f"s_mov_b32 s{S_CNT}, 0")
    e.label(lp)
    e(f"buffer_load_dwordx2 v[6:7], v4, {SRD(SRD_P)}, 0 offen sc1")
    e(f"s_add_u32 s{S_CNT}, s{S_CNT}, 1")
    e(f"s_cmp_ge_u32 s{S_CNT}, 0x100000")
    e(f"s_cbranch_scc1 {l}")
    e("s_waitcnt vmcnt(0)")
    e(f"v_cmp_ne_u32 vcc, s{S_TAG}, v6")
    e(f"v_cmp_ne_u32 s[{S_M0}:{S_M0+1}], s{S_TAG+1}, v7")
    e(f"s_or_b64 vcc, vcc, s[{S_M0}:{S_M0+1}]")
    e(f"s_cbranch_scc1 {lp}")
    e.label(l)


def poll_issue(e, addr_fn):
    l = e.new("Lpi")
    e(f"s_cmp_lg_u32 s{S_WAVE}, 4")
    e(f"s_cbranch_scc1 {l}")
    addr_fn(e)
    e("v_lshlrev_b32 v14, 3, v4")
    srd(e, SRD_P, P_WS, WS_FLAG, NFLAG * 8)
    e(f"buffer_load_dwordx2 v[10:11], v14, {SRD(SRD_P)}, 0 offen sc1")
    e.label(l)


def poll_check(e, lds_addr, key):
    lp, l, lc, lo, ld = e.new("Lpoll"), e.new("Lpx"), e.new("Lpc"), e.new("Lpo"), e.new("Lpd")
    e(f"s_xor_b32 s{S_T0}, s{S_TAG}, {key}")
    e(f"v_mov_b32 v4, {lds_addr}")
    e(f"s_mov_b32 s{S_CNT}, 0")
    e(f"s_cmp_lg_u32 s{S_WAVE}, 4")
    e(f"s_cbranch_scc1 {lo}")
    e(f"s_branch {lc}")
    e.label(lp)
    e(f"buffer_load_dwordx2 v[10:11], v14, {SRD(SRD_P)}, 0 offen sc1")
    e(f"s_add_u32 s{S_CNT}, s{S_CNT}, 1")
    e(f"s_cmp_ge_u32 s{S_CNT}, 0x100000")
    e(f"s_cbranch_scc1 {l}")
    e.label(lc)
    e("s_waitcnt vmcnt(0)")
    e(f"v_cmp_ne_u32 vcc, s{S_TAG}, v10")
    e(f"v_cmp_ne_u32 s[{S_M0}:{S_M0+1}], s{S_TAG+1}, v11")
    e(f"s_or_b64 vcc, vcc, s[{S_M0}:{S_M0+1}]")
    e(f"s_cbranch_scc1 {lp}")
    e.label(l)
    e(f"v_mov_b32 v6, s{S_T0}")
    e(f"v_mov_b32 v7, s{S_TAG+1}")
    e("ds_write_b64 v4, v[6:7]")
    e("s_waitcnt lgkmcnt(0)")
    e(f"s_branch {ld}")
    e.label(lo)
    e("ds_read_b64 v[6:7], v4")
    e(f"s_add_u32 s{S_CNT}, s{S_CNT}, 1")
    e(f"s_cmp_ge_u32 s{S_CNT}, 0x1000000")
    e(f"s_cbranch_scc1 {ld}")
    e("s_waitcnt lgkmcnt(0)")
    e(f"v_cmp_ne_u32 vcc, s{S_T0}, v6")
    e(f"v_cmp_ne_u32 s[{S_M0}:{S_M0+1}], s{S_TAG+1}, v7")
    e(f"s_or_b64 vcc, vcc, s[{S_M0}:{S_M0+1}]")
    e(f"s_cbranch_scc1 {lo}")
    e.label(ld)


def fetch_tag(e):
    srd(e, SRD_P, P_DBG, 0, 256)
    lp, lq = e.new("Ltag"), e.new("Ltq")
    e("v_mov_b32 v4, 0")
    e(f"s_mov_b32 s{S_CNT}, 0")
    e.label(lp)
    e(f"buffer_load_dwordx2 v[6:7], v4, {SRD(SRD_P)}, 0 offen sc1")
    e("s_waitcnt vmcnt(0)")
    e(f"v_readfirstlane_b32 s{S_TAG}, v6")
    e(f"v_readfirstlane_b32 s{S_TAG+1}, v7")
    e(f"s_add_u32 s{S_CNT}, s{S_CNT}, 1")
    e(f"s_cmp_ge_u32 s{S_CNT}, 0x100000")
    e(f"s_cbranch_scc1 {lq}")
    e(f"s_cmp_eq_u32 s{S_TAG}, 0")
    e(f"s_cbranch_scc1 {lp}")
    e.label(lq)


def store_flag(e):
    l = e.new("Lfl")
    e(f"s_cmp_lg_u32 s{S_WAVE}, 4")
    e(f"s_cbranch_scc1 {l}")
    srd(e, SRD_P, P_WS, WS_FLAG, NFLAG * 8)
    e(f"s_lshl_b32 s{S_T0}, s{S_FPREV}, 3")
    e(f"s_and_b32 s{S_T1}, s{S_FPREV}, 7")
    e(f"s_lshl_b32 s{S_T1}, s{S_T1}, 5")
    e(f"s_bfe_u32 s{S_T2}, s{S_FPREV}, 0x50003")
    e(f"s_add_u32 s{S_T1}, s{S_T1}, s{S_T2}")
    e(f"s_and_b32 s{S_T2}, s{S_FPREV}, 0xffffff00")
    e(f"s_add_u32 s{S_T1}, s{S_T1}, s{S_T2}")
    e(f"s_add_u32 s{S_T1}, s{S_T1}, 1280")
    e(f"s_lshl_b32 s{S_T1}, s{S_T1}, 3")
    e(f"s_sub_u32 s{S_T1}, s{S_T1}, s{S_T0}")
    e(f"v_mul_u32_u24 v4, s{S_T1}, v1")
    e(f"v_add_u32 v4, s{S_T0}, v4")
    e(f"v_mov_b32 v6, s{S_TAG}")
    e(f"v_mov_b32 v7, s{S_TAG+1}")
    e("s_mov_b64 exec, 3")
    e(f"buffer_store_dwordx2 v[6:7], v4, {SRD(SRD_P)}, 0 offen sc1")
    e("s_mov_b64 exec, -1")
    e.label(l)


def loader_setup(e, c):
    e("v_lshrrev_b32 v2, 3, v1")
    e("v_and_b32 v3, 7, v1")
    e(f"s_mul_i32 s{S_T1}, s{S_WL}, {c.nAw*8}")
    e(f"s_mov_b32 s{S_T2}, {c.lda}")
    if c.fimg:
        e(f"s_lshr_b32 s{S_T1}, s{S_ROW0}, 4")
        e(f"s_mul_i32 s{S_T2}, s{S_WL}, {c.nAw//2}")
        e(f"s_add_u32 s{S_T1}, s{S_T1}, s{S_T2}")
        e(f"s_mul_i32 s{S_T1}, s{S_T1}, {c.K*32}")
        e(f"v_lshl_add_u32 v4, v1, 4, s{S_T1}")
        for i in range(c.nAw):
            e(f"v_add_u32 v{LVA+i}, {(i>>1)*c.K*32 + (i&1)*1024}, v4")
    for i in range(0 if c.fimg else c.nAw):
        e(f"v_add3_u32 v4, v2, s{S_T1}, {8*i}")
        e("v_bfe_u32 v5, v4, 1, 3")
        e("v_xor_b32 v5, v5, v3")
        e("v_lshlrev_b32 v5, 4, v5")
        e(f"v_add_u32 v4, s{S_ROW0}, v4")
        e(f"v_mad_u32_u24 v{LVA+i}, v4, s{S_T2}, v5")
    if c.packed:
        e(f"s_mul_i32 s{S_T1}, s{S_WL}, {c.nBw*1024}")
        e(f"v_lshl_add_u32 v4, v1, 4, s{S_T1}")
        e("v_bfrev_b32 v7, 1")
        for i in range(c.nBw):
            e(f"v_add_u32 v{LVB+i}, {1024*i}, v4")
            e(f"v_cmp_gt_u32 vcc, {c.BSTEP}, v{LVB+i}")
            e("s_nop 1")
            e(f"v_cndmask_b32 v{LVB+i}, v7, v{LVB+i}, vcc")
    M = -(-65536 // c.CPR)
    e(f"s_mul_i32 s{S_T1}, s{S_WL}, {c.nBw*64}")
    e(f"s_lshl_b32 s{S_T3}, s{S_COL0}, 1")
    e(f"s_mov_b32 s{S_T2}, {M}")
    e(f"s_mov_b32 s{S_T0}, {c.ldb}")
    e("v_bfrev_b32 v7, 1")
    for i in range(0 if c.packed else c.nBw):
        e(f"v_add_u32 v4, s{S_T1}, v1")
        if i:
            e(f"v_add_u32 v4, {64*i}, v4")
        e(f"v_mul_u32_u24 v5, s{S_T2}, v4")
        e("v_lshrrev_b32 v5, 16, v5")
        e(f"v_mul_u32_u24 v6, {c.CPR}, v5")
        e("v_sub_u32 v4, v4, v6")
        for sb, db in c.swz:
            e(f"v_bfe_u32 v6, v5, {sb}, 1")
            e(f"v_lshlrev_b32 v6, {db+1}, v6")
            e("v_xor_b32 v4, v4, v6")
        if c.NT * 2 < c.CPR:
            e(f"v_cmp_gt_u32 vcc, {c.NT*2}, v4")
        e("v_lshlrev_b32 v4, 4, v4")
        e(f"v_add_u32 v4, s{S_T3}, v4")
        e(f"v_mad_u32_u24 v{LVB+i}, v5, s{S_T0}, v4")
        if c.NT * 2 < c.CPR:
            e(f"v_cndmask_b32 v{LVB+i}, v7, v{LVB+i}, vcc")
    e(f"s_mul_i32 s{S_MA}, s{S_WL}, {c.nAw*1024}")
    e(f"s_mul_i32 s{S_MB}, s{S_WL}, {c.nBw*1024}")
    e(f"s_add_u32 s{S_MB}, s{S_MB}, {c.ABYTES + c.s0*c.BUFSZ}")
    if c.s0:
        e(f"s_add_u32 s{S_MA}, s{S_MA}, {c.s0*c.BUFSZ}")
    e(f"s_mov_b32 s{S_KA}, 0")
    if c.packed:
        e(f"s_mul_i32 s{S_KB}, s{S_CT}, {c.NS*c.BSTEP}")
    else:
        e(f"s_mov_b32 s{S_KB}, 0")


def touch_contig(e, srdreg, s_start, nbytes):
    nl = -(-nbytes // 128)
    e(f"v_lshl_add_u32 v4, s{S_WL}, 6, v1")
    e("v_lshlrev_b32 v4, 7, v4")
    for i in range(-(-nl // 256)):
        if i:
            e("v_add_u32 v4, 0x8000, v4")
        e(f"v_min_u32 v5, {nbytes-4}, v4")
        e(f"buffer_load_dword v15, v5, {SRD(srdreg)}, {s_start} offen")


def touch_task(e, t):
    if 'notouch' in OPT or not getattr(t, 'share', None):
        return
    c = t.c
    (nA, shA), (nB, shB) = t.share
    abytes = c.Tm * c.K * 2 // nA
    shA(e, S_T0)
    e(f"s_mul_i32 s{S_T0}, s{S_T0}, {abytes}")
    e(f"s_mul_i32 s{S_T1}, s{S_ROW0}, {c.K*2}")
    e(f"s_add_u32 s{S_T0}, s{S_T0}, s{S_T1}")
    touch_contig(e, SRD_A, f"s{S_T0}", abytes)
    shB(e, S_T0)
    if c.packed:
        bbytes = c.NS * c.BSTEP // nB
        e(f"s_mul_i32 s{S_T0}, s{S_T0}, {bbytes}")
        e(f"s_add_u32 s{S_T0}, s{S_T0}, s{S_KB}")
        touch_contig(e, SRD_B, f"s{S_T0}", bbytes)
    else:
        rows = c.K // nB
        w = c.Tn * 2
        per = 2 if w % 128 == 0 else 4
        e(f"s_mul_i32 s{S_T0}, s{S_T0}, {rows*c.ldb}")
        e(f"s_lshl_b32 s{S_T1}, s{S_COL0}, 1")
        e(f"s_add_u32 s{S_T0}, s{S_T0}, s{S_T1}")
        e(f"s_mov_b32 s{S_T1}, {c.ldb}")
        e(f"v_lshl_add_u32 v4, s{S_WL}, 6, v1")
        for i in range(-(-(rows * per) // 256)):
            if i:
                e("v_add_u32 v4, 0x100, v4")
            e(f"v_lshrrev_b32 v5, {per.bit_length()-1}, v4")
            e(f"v_min_u32 v5, {rows-1}, v5")
            e(f"v_and_b32 v6, {per-1}, v4")
            e("v_lshlrev_b32 v6, 7, v6")
            e(f"v_min_u32 v6, {w-4}, v6")
            e(f"v_mad_u32_u24 v5, v5, s{S_T1}, v6")
            e(f"buffer_load_dword v15, v5, {SRD(SRD_B)}, s{S_T0} offen")


def issue(e, c, asc):
    for i in range(c.nAw):
        e(f"s_add_u32 m0, s{S_MA}, {1024*i}")
        e("s_nop 0")
        if 'noload' not in OPT:
            e(f"buffer_load_dwordx4 v{LVA+i}, {SRD(SRD_A)}, s{S_KA} offen{asc} lds")
    for i in range(c.nBw):
        e(f"s_add_u32 m0, s{S_MB}, {1024*i}")
        e("s_nop 0")
        if 'noload' not in OPT:
            e(f"buffer_load_dwordx4 v{LVB+i}, {SRD(SRD_B)}, s{S_KB} offen{SC if c.packed else ''} lds")
    e(f"s_add_u32 s{S_KA}, s{S_KA}, {2048 if c.fimg else 128}")
    e(f"s_add_u32 s{S_KB}, s{S_KB}, {c.BSTEP if c.packed else 64*c.ldb}")
    e(f"s_add_u32 s{S_MA}, s{S_MA}, {c.BUFSZ}")
    e(f"s_add_u32 s{S_MB}, s{S_MB}, {c.BUFSZ}")
    e(f"s_cmp_ge_u32 s{S_MA}, {c.NBUF*c.BUFSZ}")
    e(f"s_cselect_b32 s{S_BUF}, {c.NBUF*c.BUFSZ}, 0")
    e(f"s_sub_u32 s{S_MA}, s{S_MA}, s{S_BUF}")
    e(f"s_sub_u32 s{S_MB}, s{S_MB}, s{S_BUF}")


def issue_n(e, c, asc, k):
    if k == 0:
        return
    if k == 1:
        issue(e, c, asc)
        return
    lp = e.new("Liss")
    e(f"s_mov_b32 s{S_CNT}, {k}")
    e.label(lp)
    issue(e, c, asc)
    e(f"s_sub_u32 s{S_CNT}, s{S_CNT}, 1")
    e(f"s_cmp_lg_u32 s{S_CNT}, 0")
    e(f"s_cbranch_scc1 {lp}")


PUBJ = int(os.environ.get("PUBJ", "3"))


def loader_main(e, c, asc, E, pub=False, hook=None):
    assert E >= 2
    e(f"s_waitcnt vmcnt({c.n*(E-2)})")
    e("s_barrier")
    issue_n(e, c, asc, c.P - E + 1)
    lm = e.new("Lldm")
    e(f"s_mov_b32 s{S_CNT}, {c.NS - c.P - 1}")
    e.label(lm)
    e(f"s_waitcnt vmcnt({c.n*(c.P-2)})")
    e("s_barrier")
    if pub:
        l = e.new("Lnp")
        e(f"s_cmp_lg_u32 s{S_CNT}, {c.NS - c.P - PUBJ}")
        e(f"s_cbranch_scc1 {l}")
        store_flag(e)
        e.label(l)
    issue(e, c, asc)
    e(f"s_sub_u32 s{S_CNT}, s{S_CNT}, 1")
    e(f"s_cmp_lg_u32 s{S_CNT}, 0")
    e(f"s_cbranch_scc1 {lm}")
    nx = hook(e) if hook else 0
    for j in range(c.P):
        e(f"s_waitcnt vmcnt({max(0, c.n*(c.P-2-j)) + nx})")
        e("s_barrier")


class Regs:
    def __init__(self, c, nextra):
        self.ACC = 16
        p = self.ACC + c.mt * c.nt * 4
        self.R = []
        for s in range(2):
            X = p; p += c.mt * 4
            W = p; p += c.nt * 4
            self.R.append((X, W))
        self.EX = p; p += nextra * 4
        self.ONES = p; p += 4
        assert p <= VPRE, p
        self.c = c

    def acc(self, i, t):
        return self.ACC + (i * self.c.nt + t) * 4


def wmwn(e, c):
    if c.WN == 2:
        e(f"s_lshr_b32 s{S_T0}, s{S_WAVE}, 1")
        e(f"s_and_b32 s{S_T1}, s{S_WAVE}, 1")
    else:
        e(f"s_mov_b32 s{S_T0}, s{S_WAVE}")
        e(f"s_mov_b32 s{S_T1}, 0")


def gtile(e, c, t, dst):
    e(f"s_mul_i32 s{dst}, s{S_WAVE}, {c.rot}")
    e(f"s_add_u32 s{dst}, s{dst}, {t}")
    e(f"s_cmp_ge_u32 s{dst}, {c.nt}")
    e(f"s_cselect_b32 s{S_K3}, {c.nt}, 0")
    e(f"s_sub_u32 s{dst}, s{dst}, s{S_K3}")


def consumer_main(e, c, R, extras=None, nzero=0, post=None, mid=None):
    pub = PUB[0]
    e.c("---- consumer ----")
    e(f"v_and_b32 v{VJ}, 15, v1")
    e(f"v_lshrrev_b32 v{VG}, 4, v1")
    wmwn(e, c)
    if c.fimg:
        e("v_lshlrev_b32 v4, 4, v1")
    else:
        e(f"v_bfe_u32 v4, v{VJ}, 1, 3")
        e(f"v_xor_b32 v4, v4, v{VG}")
        e("v_lshlrev_b32 v4, 4, v4")
        e(f"v_lshl_add_u32 v4, v{VJ}, 7, v4")
    e(f"s_mul_i32 s{S_T2}, s{S_T0}, {c.mt*2048}")
    if c.s0:
        e(f"s_add_u32 s{S_T2}, s{S_T2}, {c.s0*c.BUFSZ}")
    e(f"v_add_u32 v{VA0}, s{S_T2}, v4")
    if not c.fimg:
        e(f"v_xor_b32 v{VA1}, 64, v{VA0}")
    if c.packed:
        e(f"v_lshrrev_b32 v4, 2, v{VJ}")
        e(f"v_and_b32 v5, 1, v{VG}")
        e("v_lshl_add_u32 v4, v5, 2, v4")
        e(f"v_lshrrev_b32 v5, 1, v{VG}")
        e("v_lshl_add_u32 v4, v5, 4, v4")
        e(f"v_mul_u32_u24 v4, {c.PSB}, v4")
        e(f"v_and_b32 v5, 3, v{VJ}")
        e("v_lshl_add_u32 v4, v5, 3, v4")
        e(f"v_add_u32 v{VBT}, {c.ABYTES + c.s0*c.BUFSZ}, v4")
        if c.rot:
            e(f"v_mov_b32 v4, v{VBT}")
            for t in range(c.nt):
                gtile(e, c, t, S_T2)
                e(f"s_lshl_b32 s{S_T2}, s{S_T2}, 5")
                e(f"v_add_u32 v{VBT+t}, s{S_T2}, v4")
    else:
        e(f"v_lshrrev_b32 v4, 2, v{VJ}")
        e(f"v_lshl_add_u32 v4, v{VG}, 3, v4")
        e("v_mov_b32 v6, 0")
        for sb, db in c.swz:
            e(f"v_bfe_u32 v5, v4, {sb}, 1")
            e(f"v_lshl_or_b32 v6, v5, {db}, v6")
        e(f"v_mul_u32_u24 v4, {c.SB}, v4")
        e(f"v_and_b32 v5, 3, v{VJ}")
        e("v_lshl_add_u32 v4, v5, 3, v4")
        e(f"v_add_u32 v4, {c.ABYTES + c.s0*c.BUFSZ}, v4")
        e(f"s_mul_i32 s{S_T3}, s{S_T1}, {c.nt}")
        for t in range(c.nt):
            e(f"s_add_u32 s{S_T2}, s{S_T3}, {t}")
            e(f"v_xor_b32 v5, s{S_T2}, v6")
            e(f"v_lshl_add_u32 v{VBT+t}, v5, 5, v4")
    e(f"s_mul_i32 s{S_T2}, s{S_WAVE}, {c.WSTG}")
    e(f"s_add_u32 s{S_T2}, s{S_T2}, {c.STG}")
    e(f"v_mul_u32_u24 v4, {c.RS}, v{VJ}")
    e(f"v_lshl_add_u32 v4, v{VG}, 3, v4")
    e(f"v_add_u32 v{VSTG}, s{S_T2}, v4")
    for r in range(R.ACC, R.ACC + c.mt * c.nt * 4):
        e(f"v_mov_b32 v{r}, 0")
    if extras:
        for r in range(R.EX, R.EX + nzero):
            e(f"v_mov_b32 v{r}, 0")
        for r in range(R.ONES, R.ONES + 4):
            e(f"v_mov_b32 v{r}, 0x3f803f80")

    def reads(s, ks):
        X, W = R.R[s]
        out = []
        va = VA0 if (ks == 0 or c.fimg) else VA1
        for i in range(c.mt):
            out.append(f"ds_read_b128 {vr(X+4*i,4)}, v{va} offset:{i*2048 + (1024*ks if c.fimg else 0)}")
        for t in range(c.nt):
            for h in range(2):
                if c.packed and c.rot:
                    out.append(f"ds_read_b64_tr_b16 {vr(W+4*t+2*h,2)}, v{VBT+t} offset:{(32*ks+8*h)*c.PSB}")
                elif c.packed:
                    out.append(f"ds_read_b64_tr_b16 {vr(W+4*t+2*h,2)}, v{VBT} offset:{(32*ks+8*h)*c.PSB + t*32}")
                else:
                    out.append(f"ds_read_b64_tr_b16 {vr(W+4*t+2*h,2)}, v{VBT+t} offset:{(32*ks+4*h)*c.SB}")
        return out

    def mfmas(s):
        X, W = R.R[s]
        out = []
        for t in range(c.nt):
            for i in range(c.mt):
                a = R.acc(i, t)
                out.append(f"v_mfma_f32_16x16x32_bf16 {vr(a,4)}, {vr(W+4*t,4)}, {vr(X+4*i,4)}, {vr(a,4)}")
        if extras:
            out += extras(s)
        return out

    def interleave(ms, rs):
        if 'nomfma' in OPT: ms = []
        k = 0
        per = -(-len(rs) // max(1, len(ms) - 2)) if rs else 0
        for m in ms:
            e(m)
            for _ in range(per):
                if k < len(rs):
                    e(rs[k]); k += 1
        while k < len(rs):
            e(rs[k]); k += 1

    def advance():
        e(f"s_add_u32 s{S_BUF}, s{S_BUF}, {c.BUFSZ}")
        e(f"s_cmp_ge_u32 s{S_BUF}, {c.NBUF*c.BUFSZ}")
        e(f"s_cselect_b32 s{S_T2}, {c.NBUF*c.BUFSZ}, 0")
        e(f"s_sub_u32 s{S_BUF}, s{S_BUF}, s{S_T2}")
        e(f"s_sub_u32 s{S_T2}, {c.BUFSZ}, s{S_T2}")
        for v in ([VA0] if c.fimg else [VA0, VA1]) + [VBT + t for t in range(1 if (c.packed and not c.rot) else c.nt)]:
            e(f"v_add_u32 v{v}, s{S_T2}, v{v}")

    e(f"s_mov_b32 s{S_BUF}, {c.s0*c.BUFSZ}")
    stamp(e, 1)
    e("s_barrier")
    stamp(e, 2)
    for r in reads(0, 0):
        e(r)
    if post:
        post(e)
    lp = e.new("Lc")

    def body(last):
        e("s_waitcnt lgkmcnt(0)")
        interleave(mfmas(0), reads(1, 1))
        if not last:
            advance()
        e("s_waitcnt lgkmcnt(0)")
        if not last:
            interleave(mfmas(1), reads(0, 0))
            if pub:
                l = e.new("Ldr")
                e(f"s_cmp_lg_u32 s{S_CNT}, {c.NS - PUBJ}")
                e(f"s_cbranch_scc1 {l}")
                e("s_waitcnt vmcnt(0)")
                e.label(l)
            if mid:
                l = e.new("Lmid")
                e(f"s_cmp_lg_u32 s{S_CNT}, {c.NS - mid[0]}")
                e(f"s_cbranch_scc1 {l}")
                mid[1](e)
                e.label(l)
            e("s_barrier")
        else:
            interleave(mfmas(1), [])
    e(f"s_mov_b32 s{S_CNT}, {c.NS-1}")
    e.label(lp)
    body(False)
    e(f"s_sub_u32 s{S_CNT}, s{S_CNT}, 1")
    e(f"s_cmp_lg_u32 s{S_CNT}, 0")
    e(f"s_cbranch_scc1 {lp}")
    body(True)
    e.nop(10)
    stamp(e, 3)


def stage_write(e, c, i, t, p):
    e(f"ds_write_b64 v{VSTG}, {vr(p,2)} offset:{i*16*c.RS + t*32}")


def stage_plain(e, c, R):
    T = R.R[0][0]
    k = 0
    for i in range(c.mt):
        for t in range(c.nt):
            a = R.acc(i, t)
            p = T + 2 * (k % 8); k += 1
            e(f"v_cvt_pk_bf16_f32 v{p}, v{a}, v{a+1}")
            e(f"v_cvt_pk_bf16_f32 v{p+1}, v{a+2}, v{a+3}")
            stage_write(e, c, i, t, p)


def stage_read(e, c, dst):
    e("s_waitcnt lgkmcnt(0)")
    for it in range(c.NI):
        e(f"ds_read_b128 {vr(dst+4*it,4)}, v{VL} offset:{it*c.RPI*c.RS}")


GELU_C0 = 2.0 * 0.7978845608028654 * 1.4426950408889634
GELU_C1 = GELU_C0 * 0.044715
X8, Y8, T8 = 40, 48, 56


def ln_gelu_tile(e, a, cs, vmb, vrs, T, p):
    for r in range(4):
        e(f"v_fma_f32 v{a+r}, -v{vmb}, v{cs+r}, v{a+r}")
    e(f"v_pk_mul_f32 {vr(a,2)}, {vr(a,2)}, {vr(vrs,2)}")
    e(f"v_pk_mul_f32 {vr(a+2,2)}, {vr(a+2,2)}, {vr(vrs,2)}")
    e(f"v_cvt_pk_bf16_f32 v{T+4}, v{a}, v{a+1}")
    e(f"v_cvt_pk_bf16_f32 v{T+5}, v{a+2}, v{a+3}")
    unpack2(e, a, T + 4)
    unpack2(e, a + 2, T + 5)
    for h in (0, 2):
        e(f"v_pk_mul_f32 {vr(T+h,2)}, {vr(a+h,2)}, {vr(a+h,2)}")
    for h in (0, 2):
        e(f"v_pk_fma_f32 {vr(T+h,2)}, {vr(T+h,2)}, {vr(VKC,2)}, {vr(VKC+2,2)}")
    for h in (0, 2):
        e(f"v_pk_mul_f32 {vr(T+h,2)}, {vr(T+h,2)}, {vr(a+h,2)}")
    for r in range(4):
        e(f"v_exp_f32 v{T+r}, v{T+r}")
    e("s_nop 0")
    for h in (0, 2):
        e(f"v_pk_add_f32 {vr(T+h,2)}, {vr(T+h,2)}, {vr(VKC+4,2)}")
    for r in range(4):
        e(f"v_rcp_f32 v{T+r}, v{T+r}")
    e("s_nop 0")
    for h in (0, 2):
        e(f"v_pk_mul_f32 {vr(a+h,2)}, {vr(a+h,2)}, {vr(T+h,2)}")
    e(f"v_cvt_pk_bf16_f32 v{p}, v{a}, v{a+1}")
    e(f"v_cvt_pk_bf16_f32 v{p+1}, v{a+2}, v{a+3}")


VKC = 236


def gelu_consts(e):
    for h in range(2):
        e(f"v_mov_b32 v{VKC+h}, {hex(f32bits(-GELU_C1))}")
        e(f"v_mov_b32 v{VKC+2+h}, {hex(f32bits(-GELU_C0))}")
        e(f"v_mov_b32 v{VKC+4+h}, 1.0")


def rnd8(e, a):
    for q in range(4):
        e(f"v_cvt_pk_bf16_f32 v{T8+q}, v{a+2*q}, v{a+2*q+1}")
    for q in range(4):
        unpack2(e, a + 2 * q, T8 + q)


def ln_from_sums(e, vsum, vsq, vmb, vrs, t):
    e(f"v_mul_f32 v{vsum}, {hex(f32bits(1.0/640))}, v{vsum}")
    e(f"v_mul_f32 v{vsq}, {hex(f32bits(1.0/640))}, v{vsq}")
    e(f"v_fma_f32 v{vsq}, -v{vsum}, v{vsum}, v{vsq}")
    e(f"v_max_f32 v{vsq}, 0, v{vsq}")
    bf16r(e, vmb, vsum)
    bf16r(e, t, vsq)
    e(f"v_add_f32 v{t}, {hex(f32bits(1e-5))}, v{t}")
    bf16r(e, t, t)
    e(f"v_sqrt_f32 v{t}, v{t}")
    e("s_nop 0")
    bf16r(e, t, t)
    e(f"v_rcp_f32 v{vrs}, v{t}")
    e("s_nop 0")


def xreduce(e, regs, t0, t1):
    for op in ("v_permlane32_swap_b32", "v_permlane16_swap_b32"):
        for r in regs:
            e(f"v_mov_b32 v{t0}, v{r}")
            e(f"v_mov_b32 v{t1}, v{r}")
            e("s_nop 1")
            e(f"{op} v{t0}, v{t1}")
            e("s_nop 0")
            e(f"v_add_f32 v{r}, v{t0}, v{t1}")


class Task:
    pass


def decode_small(e):
    e(f"s_lshr_b32 s5, s{S_XCD}, 1")
    e(f"s_and_b32 s3, s{S_XCD}, 1")
    e(f"s_and_b32 s6, s{S_SLOT}, 7")
    e("s_lshl_b32 s5, s5, 3")
    e(f"s_add_u32 s{S_RB}, s5, s6")
    e(f"s_lshr_b32 s4, s{S_SLOT}, 3")
    e("s_lshl_b32 s3, s3, 2")
    e(f"s_add_u32 s{S_CT}, s3, s4")
    e(f"s_lshl_b32 s{S_ROW0}, s{S_RB}, 6")
    e(f"s_mul_i32 s{S_COL0}, s{S_CT}, 80")
    e(f"s_lshl_b32 s{S_FNEXT}, s{S_RB}, 3")
    e(f"s_add_u32 s{S_FNEXT}, s{S_FNEXT}, s{S_CT}")


def add_col_deps(e, base):
    e("v_and_b32 v5, 31, v1")
    e(f"s_lshl_b32 s{S_T0}, s{S_CT}, 5")
    e(f"s_add_u32 s{S_T0}, s{S_T0}, {base + 1280}")
    e(f"v_add_u32 v5, s{S_T0}, v5")
    e("v_cmp_gt_u32 vcc, 32, v1")
    e("s_nop 1")
    e("v_cndmask_b32 v4, v5, v4, vcc")


def build_tasks():
    KB = 1024
    T = {}
    t = Task(); T[1] = t
    t.c = Cfg(64, 80, 640, 192, 5, 4, 1, 1280, 1280, 1280, 100 * KB)
    t.asc = ""
    t.decode = decode_small
    t.deps = None
    t.srd_ab = lambda e: (srd(e, SRD_A, P_X, 0, S * 1280), srd(e, SRD_B, P_W1, 0, 640 * 1280))
    t.srd_c = lambda e: srd(e, SRD_C, P_WS, WS_HS, S * 1280)
    t.shift = True
    t.nbar = 0
    t = Task(); T[2] = t
    t.c = Cfg(128, 128, 640, 256, 5, 2, 2, 1280, 3840, 3840, 90 * KB)
    t.asc = ""

    def dec2(e):
        e(f"s_lshr_b32 s5, s{S_XCD}, 2")
        e(f"s_and_b32 s3, s{S_XCD}, 3")
        e(f"s_and_b32 s6, s{S_SLOT}, 7")
        e("s_lshl_b32 s5, s5, 3")
        e(f"s_add_u32 s{S_RB}, s5, s6")
        e(f"s_lshr_b32 s4, s{S_SLOT}, 3")
        e("s_lshl_b32 s4, s4, 2")
        e(f"s_add_u32 s{S_CT}, s4, s3")
        e(f"s_lshl_b32 s{S_FNEXT}, s{S_RB}, 4")
        e(f"s_add_u32 s{S_FNEXT}, s{S_FNEXT}, s{S_CT}")
        e(f"s_add_u32 s{S_FNEXT}, s{S_FNEXT}, 256")
        e(f"s_min_u32 s{S_CT}, s{S_CT}, 14")
        e(f"s_lshl_b32 s{S_ROW0}, s{S_RB}, 7")
        e(f"s_lshl_b32 s{S_COL0}, s{S_CT}, 7")
    t.decode = dec2
    t.deps = None
    t.srd_ab = lambda e: (srd(e, SRD_A, P_X, 0, S * 1280), srd(e, SRD_B, P_WQKV, 0, 640 * 3840))
    t.srd_c = lambda e: srd(e, SRD_C, P_WS, WS_QKV, S * 3840)
    t.shift = False
    t.nbar = 0
    t = Task(); T[3] = t
    t.c = Cfg(64, 80, 640, 192, 5, 4, 1, 1280, 1280, 1280, 100 * KB, packed=True, fimg=True)
    t.asc = SC
    t.decode = lambda e: (decode_small(e), e(f"s_add_u32 s{S_FNEXT}, s{S_FNEXT}, 512"))

    def deps3(e):
        e("v_lshrrev_b32 v4, 3, v1")
        e("v_min_u32 v4, 2, v4")
        e(f"s_sub_u32 s{S_T0}, s{S_RB}, 1")
        e(f"v_add_u32 v4, s{S_T0}, v4")
        e("v_max_i32 v4, 0, v4")
        e("v_min_i32 v4, 31, v4")
        e("v_and_b32 v5, 7, v1")
        e("v_lshl_add_u32 v4, v4, 3, v5")
        add_col_deps(e, 0)
    t.deps = deps3
    t.srd_ab = lambda e: (srd(e, SRD_A, P_WS, WS_HS, S * 1280), srd(e, SRD_B, P_WS, WS_W2I, 640 * 1280))
    t.srd_c = lambda e: (srd(e, SRD_C, P_WS, WS_X1, S * 1280), srd(e, SRD_D, P_X, 0, S * 1280), srd(e, SRD_F, P_WS, WS_PART, S * 128))
    t.shift = False
    t.nbar = 0
    t = Task(); T[5] = t
    t.c = Cfg(128, 112, 640, 256, 5, 4, 1, 1280, 3456, 3456, 96 * KB, s0=3, packed=True, fimg=True, rot=2)
    t.asc = SC

    def dec5(e):
        e(f"s_lshr_b32 s5, s{S_XCD}, 1")
        e(f"s_and_b32 s3, s{S_XCD}, 1")
        e(f"s_and_b32 s6, s{S_SLOT}, 3")
        e("s_lshl_b32 s5, s5, 2")
        e(f"s_add_u32 s{S_RB}, s5, s6")
        e(f"s_lshr_b32 s4, s{S_SLOT}, 2")
        e("s_lshl_b32 s3, s3, 3")
        e(f"s_add_u32 s{S_CT}, s3, s4")
        e(f"s_lshl_b32 s{S_ROW0}, s{S_RB}, 7")
        e(f"s_mul_i32 s{S_COL0}, s{S_CT}, 27")
        e(f"s_lshr_b32 s{S_COL0}, s{S_COL0}, 1")
        e(f"s_lshl_b32 s{S_COL0}, s{S_COL0}, 3")
        e(f"s_lshl_b32 s{S_FNEXT}, s{S_RB}, 4")
        e(f"s_add_u32 s{S_FNEXT}, s{S_FNEXT}, s{S_CT}")
        e(f"s_add_u32 s{S_FNEXT}, s{S_FNEXT}, 1024")
    t.decode = dec5

    def deps5(e):
        e(f"s_lshl_b32 s{S_T0}, s{S_RB}, 4")
        e(f"s_add_u32 s{S_T0}, s{S_T0}, 512")
        e("v_and_b32 v4, 15, v1")
        e(f"v_add_u32 v4, s{S_T0}, v4")
        e("v_and_b32 v5, 15, v1")
        e(f"s_and_b32 s{S_T0}, s{S_CT}, 1")
        e(f"s_lshr_b32 s{S_T1}, s{S_CT}, 1")
        e(f"s_lshl_b32 s{S_T1}, s{S_T1}, 5")
        e(f"s_add_u32 s{S_T0}, s{S_T0}, s{S_T1}")
        e(f"s_add_u32 s{S_T0}, s{S_T0}, {512 + 1280}")
        e(f"v_lshl_add_u32 v5, v5, 1, s{S_T0}")
        e("v_cmp_gt_u32 vcc, 32, v1")
        e("s_nop 1")
        e("v_cndmask_b32 v4, v5, v4, vcc")
    t.deps = deps5
    t.srd_ab = lambda e: (srd(e, SRD_A, P_WS, WS_X1, S * 1280), srd(e, SRD_B, P_WS, WS_W3I, 16 * 640 * 224))
    t.srd_c = lambda e: (srd(e, SRD_C, P_WS, WS_H3, S * 3456), srd(e, SRD_F, P_WS, WS_PART, S * 128))
    t.shift = False
    t.nbar = 1
    t = Task(); T[6] = t
    t.c = Cfg(64, 80, 640, 192, 5, 4, 1, 1280, 1280, 1280, 100 * KB, packed=True, fimg=True)
    t.asc = SC
    t.decode = decode_small

    def deps6(e):
        e(f"s_lshl_b32 s{S_T0}, s{S_RB}, 3")
        e(f"s_add_u32 s{S_T0}, s{S_T0}, 768")
        e("v_and_b32 v4, 7, v1")
        e(f"v_add_u32 v4, s{S_T0}, v4")
        add_col_deps(e, 768)
    t.deps = deps6
    t.srd_ab = lambda e: (srd(e, SRD_A, P_WS, WS_O, S * 1280), srd(e, SRD_B, P_WS, WS_WOI, 640 * 1280))
    t.srd_c = lambda e: srd(e, SRD_F, P_WS, WS_G, S * 4)
    t.shift = False
    t.nbar = 0
    t = Task(); T[7] = t
    t.c = Cfg(64, 80, 1728, 192, 8, 4, 1, 3456, 1280, 1280, 100 * KB, packed=True, fimg=True)
    t.asc = SC
    t.decode = decode_small

    def deps7(e):
        e(f"s_lshr_b32 s{S_T0}, s{S_RB}, 1")
        e(f"s_lshl_b32 s{S_T0}, s{S_T0}, 4")
        e(f"s_add_u32 s{S_T0}, s{S_T0}, 1024")
        e("v_and_b32 v4, 15, v1")
        e(f"v_add_u32 v4, s{S_T0}, v4")
    t.deps = deps7
    t.srd_ab = lambda e: (srd(e, SRD_A, P_WS, WS_H3, S * 3456), srd(e, SRD_B, P_WS, WS_W4I, F * 1280))
    t.srd_c = lambda e: srd(e, SRD_C, P_OUT, 0, S * 1280)
    t.shift = False
    t.nbar = 0
    hi3 = lambda e, d: e(f"s_lshr_b32 s{d}, s{S_SLOT}, 3")
    lo3 = lambda e, d: e(f"s_and_b32 s{d}, s{S_SLOT}, 7")
    hi2 = lambda e, d: e(f"s_lshr_b32 s{d}, s{S_SLOT}, 2")
    lo2 = lambda e, d: e(f"s_and_b32 s{d}, s{S_SLOT}, 3")
    for k in (2, 3, 6, 7):
        T[k].share = ((4, hi3), (8, lo3))
    T[5].share = ((8, hi2), (4, lo2))
    return T


VPK = 120


def pack_load(e, jobs, VPK=120, NSL=6):
    slot = 0
    for (ptr, nbytes, ld, rows, cpr, setup, img) in jobs:
        setup(e)
        srd(e, SRD_P, ptr, 0, nbytes)
        M = -(-65536 // cpr)
        nch = rows * cpr
        for sidx in range(-(-nch // 256)):
            d = VPK + 4 * slot
            o = VPK + 4 * NSL + slot
            e(f"v_add_u32 v4, {256*sidx}, v0")
            e(f"v_mul_u32_u24 v5, {M}, v4")
            e("v_lshrrev_b32 v5, 16, v5")
            e(f"v_mul_u32_u24 v6, {cpr}, v5")
            e("v_sub_u32 v6, v4, v6")
            e("v_lshlrev_b32 v6, 4, v6")
            e(f"v_cmp_gt_u32 vcc, {nch}, v4")
            e(f"v_add_u32 v5, s{S_T0}, v5")
            e(f"v_mul_u32_u24 v7, {ld}, v5")
            e(f"v_add3_u32 v7, v7, v6, s{S_T1}")
            e("v_bfrev_b32 v4, 1")
            e("v_cndmask_b32 v7, v4, v7, vcc")
            e(f"buffer_load_dwordx4 {vr(d,4)}, v7, {SRD(SRD_P)}, 0 offen")
            e("v_bfe_u32 v7, v5, 2, 1")
            e(f"v_bfe_u32 v{o}, v5, 3, 1")
            e("v_and_b32 v5, 0xfffffff3, v5")
            e("v_lshl_or_b32 v5, v7, 3, v5")
            e(f"v_lshl_or_b32 v5, v{o}, 2, v5")
            e(f"v_mul_u32_u24 v5, {cpr*16}, v5")
            e(f"v_add3_u32 v5, v5, v6, s{S_T2}")
            e(f"v_cndmask_b32 v{o}, v4, v5, vcc")
            slot += 1
    return slot


def pack_store(e, nslot, VPK=120, NSL=6, wait=0):
    srd(e, SRD_P, P_WS, 0, 0x2800000)
    if wait is not None:
        e(f"s_waitcnt vmcnt({wait})")
    for slot in range(nslot):
        e(f"buffer_store_dwordx4 {vr(VPK+4*slot,4)}, v{VPK+4*NSL+slot}, {SRD(SRD_P)}, 0 offen{SC}")


def job_small(ptr, K, img):
    rows = K // 32
    def setup(e):
        e(f"s_mul_i32 s{S_T0}, s{S_RB}, {rows}")
        e(f"s_mul_i32 s{S_T1}, s{S_CT}, 160")
        e(f"s_mul_i32 s{S_T2}, s{S_CT}, {K*160}")
        e(f"s_add_u32 s{S_T2}, s{S_T2}, {img}")
    return (ptr, K * 1280, 1280, rows, 10, setup, img)


def job_w3():
    def setup(e):
        e(f"s_and_b32 s{S_T3}, s{S_RB}, 1")
        e(f"s_lshl_b32 s{S_T2}, s{S_CT}, 1")
        e(f"s_add_u32 s{S_T3}, s{S_T3}, s{S_T2}")
        e(f"s_lshr_b32 s{S_T0}, s{S_RB}, 1")
        e(f"s_mul_i32 s{S_T0}, s{S_T0}, 40")
        e(f"s_mul_i32 s{S_T1}, s{S_T3}, 27")
        e(f"s_lshr_b32 s{S_T1}, s{S_T1}, 1")
        e(f"s_lshl_b32 s{S_T1}, s{S_T1}, 4")
        e(f"s_mul_i32 s{S_T2}, s{S_T3}, {640*224}")
        e(f"s_add_u32 s{S_T2}, s{S_T2}, {WS_W3I}")
    return (P_W3, 640 * 3456, 3456, 40, 14, setup, WS_W3I)


VF4, VF2, VFB, VG1 = 234, 235, 242, 243


def fimg_addrs(e, c, Kout, shift=False):
    e(f"s_mul_i32 s{S_T0}, s{S_WAVE}, {c.RW}")
    e(f"s_add_u32 s{S_T0}, s{S_T0}, s{S_ROW0}")
    if shift:
        e(f"s_lshr_b32 s{S_T1}, s{S_CT}, 1")
        e(f"s_lshl_b32 s{S_T1}, s{S_T1}, 2")
        e(f"s_lshr_b32 s{S_T1}, 0x0413, s{S_T1}")
        e(f"s_and_b32 s{S_T1}, s{S_T1}, 15")
        e(f"s_add_u32 s{S_T0}, s{S_T0}, s{S_T1}")
        e(f"s_sub_u32 s{S_T0}, s{S_T0}, 2")
    e("v_and_b32 v4, 15, v1")
    e(f"v_add_u32 v4, s{S_T0}, v4")
    if shift:
        e(f"v_cmp_gt_u32 vcc, {S}, v4")
    e("v_lshrrev_b32 v5, 4, v4")
    e(f"v_mul_u32_u24 v5, {Kout*32}, v5")
    e("v_and_b32 v4, 15, v4")
    e("v_lshl_add_u32 v5, v4, 4, v5")
    e(f"s_lshl_b32 s{S_T1}, s{S_COL0}, 5")
    e(f"v_add_u32 v5, s{S_T1}, v5")
    e("v_lshrrev_b32 v6, 4, v1")
    e("v_and_b32 v7, 1, v6")
    e("v_lshrrev_b32 v6, 1, v6")
    e("v_lshl_add_u32 v4, v6, 8, v5")
    e(f"v_lshl_add_u32 v{VF4}, v7, 9, v4")
    e(f"v_lshl_add_u32 v{VF2}, v7, 3, v4")
    e(f"v_mov_b32 v{VFB}, v4")
    e(f"v_mov_b32 v{VG1}, v7")
    if shift:
        e("v_bfrev_b32 v7, 1")
        e(f"v_cndmask_b32 v{VF4}, v7, v{VF4}, vcc")
        e(f"v_cndmask_b32 v{VF2}, v7, v{VF2}, vcc")


def fimg_store_pair(e, p, so, off, va=None):
    e("s_nop 1")
    e(f"v_permlane16_swap_b32 v{p}, v{p+2}")
    e(f"v_permlane16_swap_b32 v{p+1}, v{p+3}")
    e(f"buffer_store_dwordx4 {vr(p,4)}, v{va if va else VF4}, {SRD(SRD_C)}, {so} offen offset:{off}{SC}")


def fimg_store_one(e, p, so, off):
    e(f"buffer_store_dwordx2 {vr(p,2)}, v{VF2}, {SRD(SRD_C)}, {so} offen offset:{off}{SC}")


def store_rows(e, c, src, sc=SC):
    for it in range(c.NI):
        e(f"s_waitcnt lgkmcnt({c.NI-1-it})")
        so = soff(e, c, it)
        e(f"buffer_store_dwordx4 {vr(src+4*it,4)}, v{VGO}, {SRD(SRD_C)}, {so} offen{sc}")


def mall_touch(e, items):
    if 'nomall' in OPT: return
    for ptr, nbytes in items:
        sl = nbytes // 256
        srd(e, SRD_P, ptr, 0, nbytes)
        e(f"s_mul_i32 s{S_T0}, s2, {sl}")
        e("v_lshlrev_b32 v4, 7, v0")
        e(f"v_cmp_gt_u32 vcc, {sl}, v4")
        e("v_bfrev_b32 v5, 1")
        e("s_nop 0")
        e("v_cndmask_b32 v4, v5, v4, vcc")
        e(f"buffer_load_dword v15, v4, {SRD(SRD_P)}, s{S_T0} offen")


def t1_consumer(e, t):
    c = t.c
    R = Regs(c, 7)
    SUM, SQ, CS = R.EX, R.EX + 4, R.EX + 8

    def extras(s):
        X, W = R.R[s]
        o = [f"v_mfma_f32_16x16x32_bf16 {vr(SUM,4)}, {vr(R.ONES,4)}, {vr(X,4)}, {vr(SUM,4)}",
             f"v_mfma_f32_16x16x32_bf16 {vr(SQ,4)}, {vr(X,4)}, {vr(X,4)}, {vr(SQ,4)}"]
        for u in range(5):
            o.append(f"v_mfma_f32_16x16x32_bf16 {vr(CS+4*u,4)}, {vr(W+4*u,4)}, {vr(R.ONES,4)}, {vr(CS+4*u,4)}")
        return o

    npk = 2
    V = os.environ.get("VAR", "1")
    if V != "0":
        mall_touch(e, [(P_X, S * 1280), (P_W1, 640 * 1280)])
    pk = lambda e: pack_load(e, [job_small(P_W2, 640, WS_W2I), job_small(P_WO, 640, WS_WOI)], 120, 2)
    if V in ("0", "2"):
        pk(e)
    clayout_off(e, VXO)
    e(f"s_lshl_b32 s{S_T1}, s{S_CT}, 14")
    e(f"v_lshl_add_u32 v{VPA}, v4, 3, s{S_T1}")
    consumer_main(e, c, R, extras, 28, post=lambda e: (mall_touch(e, [(P_WQKV, 640 * 3840)]), pk(e) if V == "1" else None),
                  mid=(int(os.environ.get("MJ", "5")), lambda e: mall_touch(e, [(P_W3, 640 * 3456), (P_W4, F * 1280)])))
    pack_load(e, [job_w3()], 150, 3)
    pack_store(e, npk, 120, 2, wait=3)
    T = R.R[0][0]
    e(f"v_and_b32 v4, 3, v{VJ}")
    e(f"v_cmp_eq_u32 s[{S_M1}:{S_M1+1}], 1, v4")
    e(f"v_cmp_eq_u32 s[{S_M2}:{S_M2+1}], 2, v4")
    e(f"v_cmp_eq_u32 s[{S_M3}:{S_M3+1}], 3, v4")
    e(f"v_lshrrev_b32 v5, 2, v{VJ}")
    e(f"v_cmp_eq_u32 s[{S_M0}:{S_M0+1}], v5, v{VG}")
    gelu_consts(e)
    e(f"v_cndmask_b32 v{SQ}, v{SQ}, v{SQ+1}, s[{S_M1}:{S_M1+1}]")
    e(f"v_cndmask_b32 v{SQ}, v{SQ}, v{SQ+2}, s[{S_M2}:{S_M2+1}]")
    e(f"v_cndmask_b32 v{SQ}, v{SQ}, v{SQ+3}, s[{S_M3}:{S_M3+1}]")
    e(f"v_cndmask_b32 v{SQ}, 0, v{SQ}, s[{S_M0}:{S_M0+1}]")
    xreduce(e, [SQ], T, T + 1)
    ln_from_sums(e, SUM, SQ, SUM + 1, SUM + 2, 4)
    e(f"v_mov_b32 v{SUM+3}, v{SUM+2}")
    D0 = R.R[1][0]
    for tt in range(5):
        ln_gelu_tile(e, R.acc(0, tt), CS + 4 * tt, SUM + 1, SUM + 2, T, D0 + 2 * tt)
        if tt % 2 == 1:
            fimg_store_pair(e, D0 + 2 * tt - 2, "0", (tt - 1) * 512)
    fimg_store_one(e, D0 + 8, "0", 4 * 512)
    lz = e.new("Lz")
    e(f"s_cmp_lg_u32 s{S_WAVE}, 0")
    e(f"s_cbranch_scc1 {lz}")
    e(f"s_cmp_eq_u32 s{S_FNEXT}, 0")
    e(f"s_cselect_b32 s{S_T0}, 1, 0")
    e(f"s_cmp_eq_u32 s{S_FNEXT}, 248")
    e(f"s_cselect_b32 s{S_T0}, 2, s{S_T0}")
    e(f"s_cmp_eq_u32 s{S_T0}, 0")
    e(f"s_cbranch_scc1 {lz}")
    e("v_lshlrev_b32 v4, 8, v1")
    for r in range(4):
        e(f"v_mov_b32 v{T+r}, 0")
    e("s_mov_b64 exec, 0xfffff")
    fo = lambda r, c_: (r >> 4) * 640 * 32 + (r & 15) * 16 + (c_ // 8) * 256
    for (r1, c1), (r2, c2) in (((0, 0), (2047, 160)), ((0, 320), (2046, 480)), ((1, 320), (2047, 480))):
        e(f"s_mov_b32 s{S_T3}, {fo(r2, c2)}")
        e(f"s_cmp_eq_u32 s{S_T0}, 1")
        e(f"s_cselect_b32 s{S_T3}, {fo(r1, c1)}, s{S_T3}")
        e(f"buffer_store_dwordx4 {vr(T,4)}, v4, {SRD(SRD_C)}, s{S_T3} offen{SC}")
    e("s_mov_b64 exec, -1")
    e.label(lz)


def t2_consumer(e, t):
    c = t.c
    R = Regs(c, 0)
    consumer_main(e, c, R, mid=(PUBJ + 2, lambda e: pack_store(e, 3, 150, 3, wait=None)))
    srd(e, SRD_D, P_X, 0, S * 1280)
    for tt in range(5):
        e(f"buffer_load_dwordx2 {vr(VXP+2*tt,2)}, v{VXO}, {SRD(SRD_D)}, 0 offen offset:{tt*32}")
    stage_plain(e, c, R)
    stage_read(e, c, R.ACC)
    store_rows(e, c, R.ACC)


def clayout_off(e, dst):
    e(f"s_lshl_b32 s{S_T0}, s{S_WAVE}, 4")
    e(f"s_add_u32 s{S_T0}, s{S_T0}, s{S_ROW0}")
    e("v_and_b32 v4, 15, v1")
    e(f"v_add_u32 v4, s{S_T0}, v4")
    e("v_lshrrev_b32 v5, 4, v1")
    e(f"s_lshl_b32 s{S_T1}, s{S_COL0}, 1")
    e(f"v_lshl_add_u32 v5, v5, 3, s{S_T1}")
    e(f"s_mov_b32 s{S_T2}, 1280")
    e(f"v_mad_u32_u24 v{dst}, v4, s{S_T2}, v5")


def t3_consumer(e, t):
    c = t.c
    R = Regs(c, 0)
    consumer_main(e, c, R)
    att_preloads(e)
    pack_load(e, [job_small(P_W4, F, WS_W4I)], VPRE, 3)
    T = R.R[0][0]
    D0 = R.R[1][0]
    PS = T + 12
    e(f"v_mov_b32 v{PS}, 0")
    e(f"v_mov_b32 v{PS+1}, 0")
    for tt in range(5):
        a = R.acc(0, tt)
        k = VKX + 2 * tt
        e(f"v_cvt_pk_bf16_f32 v{T+4}, v{a}, v{a+1}")
        e(f"v_cvt_pk_bf16_f32 v{T+5}, v{a+2}, v{a+3}")
        unpack2(e, T, T + 4)
        unpack2(e, T + 2, T + 5)
        unpack2(e, T + 4, VXP + 2 * tt)
        unpack2(e, T + 6, VXP + 2 * tt + 1)
        e(f"v_pk_add_f32 {vr(T,2)}, {vr(T,2)}, {vr(T+4,2)}")
        e(f"v_pk_add_f32 {vr(T+2,2)}, {vr(T+2,2)}, {vr(T+6,2)}")
        e(f"v_cvt_pk_bf16_f32 v{k}, v{T}, v{T+1}")
        e(f"v_cvt_pk_bf16_f32 v{k+1}, v{T+2}, v{T+3}")
        e(f"v_mov_b32 v{D0+2*tt}, v{k}")
        e(f"v_mov_b32 v{D0+2*tt+1}, v{k+1}")
        if tt % 2 == 1:
            fimg_store_pair(e, D0 + 2 * tt - 2, "0", (tt - 1) * 512)
        unpack2(e, T, k)
        unpack2(e, T + 2, k + 1)
        for r in range(4):
            e(f"v_add_f32 v{PS}, v{PS}, v{T+r}")
            e(f"v_fmac_f32 v{PS+1}, v{T+r}, v{T+r}")
    fimg_store_one(e, D0 + 8, "0", 4 * 512)
    xreduce(e, [PS, PS + 1], T, T + 1)
    e("s_mov_b64 exec, 0xffff")
    e(f"buffer_store_dwordx2 {vr(PS,2)}, v{VPA}, {SRD(SRD_F)}, 0 offen{SC}")
    e("s_mov_b64 exec, -1")


def t5_consumer(e, t):
    c = t.c
    R = Regs(c, 2)
    CS, PR = R.EX, VPRE

    def extras(s):
        X, W = R.R[s]
        return [f"v_mfma_f32_16x16x32_bf16 {vr(CS+4*u,4)}, {vr(W+4*u,4)}, {vr(R.ONES,4)}, {vr(CS+4*u,4)}" for u in range(2)]

    def post(e):
        e(f"s_lshl_b32 s{S_T2}, s{S_WAVE}, 5")
        e(f"s_add_u32 s{S_T2}, s{S_T2}, s{S_ROW0}")
        e(f"v_add_u32 v4, s{S_T2}, v{VJ}")
        e("v_lshlrev_b32 v4, 3, v4")
        e(f"v_lshl_add_u32 v4, v{VG}, 15, v4")
        e(f"s_mov_b32 s{S_T2}, 16384")
        for i in range(2):
            e(f"buffer_load_dwordx2 {vr(PR+4*i,2)}, v4, {SRD(SRD_F)}, 0 offen offset:{i*128}{SC}")
            e(f"buffer_load_dwordx2 {vr(PR+4*i+2,2)}, v4, {SRD(SRD_F)}, s{S_T2} offen offset:{i*128}{SC}")

    consumer_main(e, c, R, extras, 8, mid=(PUBJ + 1, post))
    T = R.R[0][0]
    CSR = R.R[1][0]
    e(f"v_cmp_eq_u32 s[{S_M0}:{S_M0+1}], 0, v{VJ}")
    for u in range(2):
        gtile(e, c, u, S_T2)
        e(f"s_lshl_b32 s{S_T2}, s{S_T2}, 6")
        e(f"s_add_u32 s{S_T2}, s{S_T2}, {c.STG}")
        e(f"v_lshl_add_u32 v{4+u}, v{VG}, 4, s{S_T2}")
    e(f"s_mov_b64 exec, s[{S_M0}:{S_M0+1}]")
    for u in range(2):
        e(f"ds_write_b128 v{4+u}, {vr(CS+4*u,4)}")
    e("s_mov_b64 exec, -1")
    e("s_waitcnt lgkmcnt(0)")
    e("s_barrier")
    for tt in range(c.nt):
        gtile(e, c, tt, S_T2)
        e(f"s_lshl_b32 s{S_T2}, s{S_T2}, 6")
        e(f"s_add_u32 s{S_T2}, s{S_T2}, {c.STG}")
        e(f"v_lshl_add_u32 v4, v{VG}, 4, s{S_T2}")
        e(f"ds_read_b128 {vr(CSR+4*tt,4)}, v4")
    gelu_consts(e)
    e("s_waitcnt vmcnt(0)")
    for i in range(2):
        e(f"v_add_f32 v{PR+4*i}, v{PR+4*i}, v{PR+4*i+2}")
        e(f"v_add_f32 v{PR+4*i+1}, v{PR+4*i+1}, v{PR+4*i+3}")
    xreduce(e, [PR, PR + 1, PR + 4, PR + 5], T, T + 1)
    for i in range(2):
        ln_from_sums(e, PR + 4 * i, PR + 4 * i + 1, PR + 8 + i, PR + 4 * i + 2, 4)
        e(f"v_mov_b32 v{PR+4*i+3}, v{PR+4*i+2}")
    e("s_waitcnt lgkmcnt(0)")
    k = 0
    for tp in range(0, 7, 2):
        gtile(e, c, tp, S_T0)
        e(f"s_lshl_b32 s{S_T0}, s{S_T0}, 9")
        if tp < 6:
            gtile(e, c, tp + 1, S_T1)
            e(f"s_lshl_b32 s{S_T1}, s{S_T1}, 9")
            e(f"s_sub_u32 s{S_T1}, s{S_T1}, s{S_T0}")
            e(f"v_mad_i32_i24 v{VF4}, v{VG1}, s{S_T1}, v{VFB}")
            e(f"v_add_u32 v{VF4}, s{S_T0}, v{VF4}")
            e(f"s_mov_b32 s{S_T0}, 0")
        e(f"s_add_u32 s{S_T1}, s{S_T0}, {F*32}")
        for i in range(2):
            p = T + 8 + 4 * (k % 4); k += 1
            ln_gelu_tile(e, R.acc(i, tp), CSR + 4 * tp, PR + 8 + i, PR + 4 * i + 2, T, p)
            so = f"s{S_T1}" if i else f"s{S_T0}"
            if tp < 6:
                ln_gelu_tile(e, R.acc(i, tp + 1), CSR + 4 * (tp + 1), PR + 8 + i, PR + 4 * i + 2, T, p + 2)
                fimg_store_pair(e, p, so, 0)
            else:
                fimg_store_one(e, p, so, 0)


def t6_consumer(e, t):
    c = t.c
    R = Regs(c, 0)

    def post(e):
        e(f"v_lshlrev_b32 v4, 2, v{VJ}")
        e(f"s_lshl_b32 s{S_T0}, s{S_WAVE}, 4")
        e(f"s_add_u32 s{S_T0}, s{S_T0}, s{S_ROW0}")
        e(f"s_lshl_b32 s{S_T0}, s{S_T0}, 2")
        e(f"buffer_load_dword v{VGT}, v4, {SRD(SRD_F)}, s{S_T0} offen{SC}")

    consumer_main(e, c, R, mid=(PUBJ + 1, post))
    for tt in range(5):
        a = R.acc(0, tt)
        e(f"v_cvt_pk_bf16_f32 v{VKA+2*tt}, v{a}, v{a+1}")
        e(f"v_cvt_pk_bf16_f32 v{VKA+2*tt+1}, v{a+2}, v{a+3}")


def t7_consumer(e, t):
    c = t.c
    R = Regs(c, 0)
    consumer_main(e, c, R)
    T = R.R[0][0]
    OMG, G2 = T + 12, T + 14
    e("s_waitcnt vmcnt(0)")
    e(f"v_sub_f32 v{OMG}, 1.0, v{VGT}")
    bf16r(e, OMG, OMG)
    e(f"v_mov_b32 v{OMG+1}, v{OMG}")
    e(f"v_mov_b32 v{G2}, v{VGT}")
    e(f"v_mov_b32 v{G2+1}, v{VGT}")

    def rnd4(a):
        e(f"v_cvt_pk_bf16_f32 v{T+8}, v{a}, v{a+1}")
        e(f"v_cvt_pk_bf16_f32 v{T+9}, v{a+2}, v{a+3}")
        unpack2(e, a, T + 8)
        unpack2(e, a + 2, T + 9)

    def pk(op, d, a, b, bs=2):
        e(f"{op} {vr(d,2)}, {vr(a,2)}, {vr(b,2)}")
        e(f"{op} {vr(d+2,2)}, {vr(a+2,2)}, {vr(b+bs,2)}")

    for tt in range(5):
        a = R.acc(0, tt)
        p = T + 16 + 2 * (tt % 4)
        rnd4(a)
        unpack2(e, T, VKX + 2 * tt)
        unpack2(e, T + 2, VKX + 2 * tt + 1)
        pk("v_pk_add_f32", a, a, T)
        rnd4(a)
        pk("v_pk_mul_f32", a, a, OMG, 0)
        rnd4(a)
        unpack2(e, T, VKA + 2 * tt)
        unpack2(e, T + 2, VKA + 2 * tt + 1)
        pk("v_pk_mul_f32", T, T, G2, 0)
        rnd4(T)
        pk("v_pk_add_f32", a, a, T)
        e(f"v_cvt_pk_bf16_f32 v{p}, v{a}, v{a+1}")
        e(f"v_cvt_pk_bf16_f32 v{p+1}, v{a+2}, v{a+3}")
        stage_write(e, c, 0, tt, p)
    D0 = R.R[1][0]
    stage_read(e, c, D0)
    store_rows(e, c, D0, "")


ATT_N = 83


def att_decode(e):
    decode_small(e)
    e(f"s_lshl_b32 s{S_T0}, s{S_CT}, 3")
    e(f"s_add_u32 s{S_ROW0}, s{S_ROW0}, s{S_T0}")
    e(f"s_add_u32 s{S_FNEXT}, s{S_FNEXT}, 768")


def deps_a(e):
    e(f"s_sub_u32 s{S_T0}, s{S_ROW0}, 14")
    e(f"s_max_i32 s{S_T0}, s{S_T0}, 0")
    e(f"s_lshr_b32 s{S_T0}, s{S_T0}, 7")
    e(f"s_lshr_b32 s{S_T1}, s{S_ROW0}, 7")
    e(f"s_sub_u32 s{S_T1}, s{S_T1}, s{S_T0}")
    e("v_bfe_u32 v4, v1, 4, 1")
    e(f"v_mul_u32_u24 v4, s{S_T1}, v4")
    e(f"v_add_u32 v4, s{S_T0}, v4")
    e("v_and_b32 v5, 15, v1")
    e("v_lshl_add_u32 v4, v4, 4, v5")
    e("v_add_u32 v4, 0x100, v4")


def att_loader_setup(e):
    e(f"s_sub_u32 s{S_T0}, s{S_ROW0}, 14")
    e(f"s_mul_i32 s{S_T0}, s{S_T0}, 3840")
    e(f"s_lshl_b32 s{S_MA}, s{S_WL}, 10")
    e(f"s_add_u32 s{S_T0}, s{S_T0}, s{S_MA}")
    e(f"v_lshl_add_u32 v{LVA}, v1, 4, s{S_T0}")
    e(f"v_bfrev_b32 v{LVA+1}, 1")
    srd(e, SRD_A, P_WS, WS_QKV, S * 3840)


def att_issue(e, k):
    lp = e.new("Lai")
    e(f"s_mov_b32 s{S_CNT}, {k}")
    e.label(lp)
    e(f"v_cmp_gt_i32 vcc, 0, v{LVA}")
    e(f"s_mov_b32 m0, s{S_MA}")
    e(f"s_add_u32 s{S_MA}, s{S_MA}, 0x1000")
    e(f"v_cndmask_b32 v3, v{LVA}, v{LVA+1}, vcc")
    e(f"buffer_load_dwordx4 v3, {SRD(SRD_A)}, 0 offen{SC} lds")
    e(f"v_add_u32 v{LVA}, 0x1000, v{LVA}")
    e(f"s_sub_u32 s{S_CNT}, s{S_CNT}, 1")
    e(f"s_cmp_lg_u32 s{S_CNT}, 0")
    e(f"s_cbranch_scc1 {lp}")


GX, GWR = 150, 160


def att_preloads(e):
    srd(e, SRD_E, P_GW, 0, 1280)
    e(f"s_lshl_b32 s{S_T0}, s{S_CT}, 3")
    e(f"s_add_u32 s{S_T0}, s{S_T0}, s{S_ROW0}")
    e("v_lshrrev_b32 v4, 5, v0")
    e("v_and_b32 v5, 31, v0")
    e("v_mul_u32_u24 v6, 40, v5")
    e(f"v_add_u32 v4, s{S_T0}, v4")
    e(f"s_mov_b32 s{S_T2}, 1280")
    e(f"v_mad_u32_u24 v5, v4, s{S_T2}, v6")
    e(f"buffer_load_dwordx4 {vr(GX,4)}, v5, {SRD(SRD_D)}, 0 offen")
    e(f"buffer_load_dwordx4 {vr(GX+4,4)}, v5, {SRD(SRD_D)}, 0 offen offset:16")
    e(f"buffer_load_dwordx2 {vr(GX+8,2)}, v5, {SRD(SRD_D)}, 0 offen offset:32")
    e(f"buffer_load_dwordx4 {vr(GWR,4)}, v6, {SRD(SRD_E)}, 0 offen")
    e(f"buffer_load_dwordx4 {vr(GWR+4,4)}, v6, {SRD(SRD_E)}, 0 offen offset:16")
    e(f"buffer_load_dwordx2 {vr(GWR+8,2)}, v6, {SRD(SRD_E)}, 0 offen offset:32")


def attention(e):
    stamp(e, 0)
    e("s_barrier")
    att_decode(e)
    srd(e, SRD_C, P_WS, WS_O, S * 1280)
    srd(e, SRD_F, P_WS, WS_G, S * 4)
    e("v_lshrrev_b32 v4, 5, v0")
    e("v_and_b32 v14, 31, v0")
    e("v_mul_u32_u24 v6, 40, v14")
    e("v_mul_u32_u24 v8, 3840, v4")
    e("v_add_u32 v8, v8, v6")
    e(f"v_add_u32 v9, s{S_ROW0}, v4")
    stamp(e, 1)
    e("s_waitcnt vmcnt(0)")
    e("s_barrier")
    stamp(e, 2)
    Q, KK, LG = 16, 32, 112
    for d in range(5):
        e(f"ds_read_b64 {vr(Q+2*d,2)}, v8 offset:{14*3840 + 8*d}")
    for d in range(10):
        e(f"ds_read_b64 {vr(KK+2*d,2)}, v8 offset:{(14-2*(d//5))*3840 + 1280 + 8*(d%5)}")
    GS = 170
    e(f"v_mov_b32 v{GS}, 0")
    for d in range(10):
        unpack2(e, GS + 1, GX + d)
        unpack2(e, GS + 3, GWR + d)
        e(f"v_mul_f32 v{GS+1}, v{GS+1}, v{GS+3}")
        e(f"v_mul_f32 v{GS+2}, v{GS+2}, v{GS+4}")
        e(f"v_cvt_pk_bf16_f32 v{GS+1}, v{GS+1}, v{GS+2}")
        unpack2(e, GS + 2, GS + 1)
        e(f"v_add_f32 v{GS}, v{GS}, v{GS+2}")
        e(f"v_add_f32 v{GS}, v{GS}, v{GS+3}")
    for sh in (8, 4, 2, 1):
        e("s_nop 1")
        e(f"v_add_f32_dpp v{GS}, v{GS}, v{GS} row_ror:{sh} row_mask:0xf bank_mask:0xf")
    e(f"v_mov_b32 v{GS+1}, v{GS}")
    e(f"v_mov_b32 v{GS+2}, v{GS}")
    e("s_nop 1")
    e(f"v_permlane16_swap_b32 v{GS+1}, v{GS+2}")
    e("s_nop 0")
    e(f"v_add_f32 v{GS}, v{GS+1}, v{GS+2}")
    bf16r(e, GS, GS)
    e(f"v_mul_f32 v{GS}, {hex(f32bits(-1.4426950408889634))}, v{GS}")
    e(f"v_exp_f32 v{GS}, v{GS}")
    e("s_nop 0")
    e(f"v_add_f32 v{GS}, 1.0, v{GS}")
    e(f"v_rcp_f32 v{GS}, v{GS}")
    e("s_nop 0")
    bf16r(e, GS, GS)
    for w in range(8):
        if w % 2 == 0:
            e("s_waitcnt lgkmcnt(0)")
            if w < 6:
                for d in range(10):
                    ww = w + 2 + d // 5
                    e(f"ds_read_b64 {vr(KK+10*ww+2*(d%5),2)}, v8 offset:{(14-2*ww)*3840 + 1280 + 8*(d%5)}")
        e(f"v_mov_b32 v{LG+w}, 0")
        for d in range(10):
            e(f"v_dot2_f32_bf16 v{LG+w}, v{Q+d}, v{KK+10*w+d}, v{LG+w}")
    e.nop(4)
    vreads = []
    for w in range(8):
        for d in range(5):
            vreads.append(f"ds_read_b64 {vr(KK+10*w+2*d,2)}, v8 offset:{(14-2*w)*3840 + 2560 + 8*d}")
    for r in vreads[:15]:
        e(r)
    e(f"s_mov_b32 s{S_K0}, {hex(f32bits(20 ** -0.5))}")
    e(f"v_mov_b32 v10, {hex(f32bits(-1e9) & 0xffff0000)}")
    for w in range(8):
        bf16r(e, LG + w, LG + w)
        e(f"v_mul_f32 v{LG+w}, s{S_K0}, v{LG+w}")
        bf16r(e, LG + w, LG + w)
        if w:
            e(f"v_cmp_gt_u32 vcc, {2*w}, v9")
            e("s_nop 1")
            e(f"v_cndmask_b32 v{LG+w}, v{LG+w}, v10, vcc")
    e(f"v_max3_f32 v11, v{LG}, v{LG+1}, v{LG+2}")
    e(f"v_max3_f32 v11, v11, v{LG+3}, v{LG+4}")
    e(f"v_max3_f32 v11, v11, v{LG+5}, v{LG+6}")
    e(f"v_max_f32 v11, v11, v{LG+7}")
    e(f"s_mov_b32 s{S_K1}, {hex(f32bits(1.4426950408889634))}")
    for w in range(8):
        e(f"v_sub_f32 v{LG+w}, v{LG+w}, v11")
        e(f"v_mul_f32 v{LG+w}, s{S_K1}, v{LG+w}")
        e(f"v_exp_f32 v{LG+w}, v{LG+w}")
    e("s_waitcnt lgkmcnt(0)")
    for r in vreads[15:30]:
        e(r)
    e(f"v_add_f32 v12, v{LG}, v{LG+1}")
    for w in range(2, 8):
        e(f"v_add_f32 v12, v12, v{LG+w}")
    e("v_rcp_f32 v12, v12")
    e("s_nop 0")
    for w in range(8):
        e(f"v_mul_f32 v{LG+w}, v{LG+w}, v12")
    PP = 120
    for w in range(4):
        e(f"v_cvt_pk_bf16_f32 v{PP+w}, v{LG+2*w}, v{LG+2*w+1}")
    e("s_waitcnt lgkmcnt(0)")
    for r in vreads[30:]:
        e(r)
    e(f"s_mov_b32 s{S_K2}, 0x05040100")
    e(f"s_mov_b32 s{S_K3}, 0x07060302")
    O = 124
    for r in range(20):
        e(f"v_mov_b32 v{O+r}, 0")
    for wp in range(4):
        if wp == 3:
            e("s_waitcnt lgkmcnt(0)")
            stamp(e, 3)
        a, b = KK + 10 * (2 * wp), KK + 10 * (2 * wp + 1)
        for d in range(10):
            e(f"v_perm_b32 v{Q+(d%2)*2}, v{b+d}, v{a+d}, s{S_K2}")
            e(f"v_perm_b32 v{Q+(d%2)*2+1}, v{b+d}, v{a+d}, s{S_K3}")
            e(f"v_dot2_f32_bf16 v{O+2*d}, v{Q+(d%2)*2}, v{PP+wp}, v{O+2*d}")
            e(f"v_dot2_f32_bf16 v{O+2*d+1}, v{Q+(d%2)*2+1}, v{PP+wp}, v{O+2*d+1}")
    e.nop(4)
    for d in range(10):
        e(f"v_cvt_pk_bf16_f32 v{KK+d}, v{O+2*d}, v{O+2*d+1}")
    e("v_lshrrev_b32 v4, 5, v0")
    e("v_mul_u32_u24 v4, 1296, v4")
    e(f"v_add3_u32 v4, v4, v6, {0}")
    e(f"v_add_u32 v4, {84*1024}, v4")
    for d in range(5):
        e(f"ds_write_b64 v4, {vr(KK+2*d,2)} offset:{8*d}")
    e("v_and_b32 v6, 7, v0")
    e("v_lshrrev_b32 v7, 3, v0")
    e("v_mul_u32_u24 v5, 1296, v6")
    e("v_lshl_add_u32 v5, v7, 4, v5")
    e(f"v_add_u32 v5, {84*1024}, v5")
    e("v_lshlrev_b32 v6, 4, v6")
    e("v_lshl_add_u32 v6, v7, 8, v6")
    e(f"s_lshr_b32 s{S_T2}, s{S_ROW0}, 4")
    e(f"s_mul_i32 s{S_T2}, s{S_T2}, 20480")
    e(f"s_and_b32 s{S_T1}, s{S_ROW0}, 15")
    e(f"s_lshl_b32 s{S_T1}, s{S_T1}, 4")
    e(f"s_add_u32 s{S_T1}, s{S_T1}, s{S_T2}")
    e("s_waitcnt lgkmcnt(0)")
    e("s_barrier")
    for i in range(3):
        e(f"ds_read_b128 {vr(Q+4*i,4)}, v5 offset:{512*i}")
    lsk = e.new("Lsk")
    for i in range(3):
        e(f"s_waitcnt lgkmcnt({2-i})")
        if i == 2:
            e(f"s_cmp_ge_u32 s{S_WAVE}, 2")
            e(f"s_cbranch_scc1 {lsk}")
        e(f"buffer_store_dwordx4 {vr(Q+4*i,4)}, v6, {SRD(SRD_C)}, s{S_T1} offen{SC}")
        e(f"s_add_u32 s{S_T1}, s{S_T1}, 8192")
    e.label(lsk)
    pack_store(e, 3, VPRE, 3, wait=None)
    e(f"v_lshlrev_b32 v{GS+1}, 2, v9")
    e("v_cmp_eq_u32 vcc, 0, v14")
    e("s_nop 1")
    e("s_mov_b64 exec, vcc")
    e(f"buffer_store_dword v{GS}, v{GS+1}, {SRD(SRD_F)}, 0 offen{SC}")
    e("s_mov_b64 exec, -1")
    stamp(e, 4)
    stamp_flush(e, 5)


def main():
    e = E()
    T = build_tasks()
    name = NAME + "_kernel"
    e.L += [f".globl {name}", ".p2align 8", f".type {name},@function"]
    e.label(name)
    e("s_cmp_ge_u32 s2, 256")
    e("s_cbranch_scc1 Lend")
    e("s_load_dwordx16 s[16:31], s[0:1], 0")
    e("s_load_dwordx8 s[32:39], s[0:1], 64")
    e("v_lshrrev_b32 v1, 6, v0")
    e(f"s_and_b32 s{S_XCD}, s2, 7")
    e(f"v_readfirstlane_b32 s{S_WAVE}, v1")
    e(f"s_lshr_b32 s{S_SLOT}, s2, 3")
    e("v_and_b32 v1, 63, v0")
    e(f"s_sub_u32 s{S_WL}, s{S_WAVE}, 4")
    e("v_mov_b32 v14, 0")
    if 'nocode' not in OPT:
        lcp = e.new("Lcp")
        e(f"s_cmp_lg_u32 s{S_WAVE}, 2")
        e(f"s_cbranch_scc1 {lcp}")
        e("s_getpc_b64 s[4:5]")
        e.label("Lpc0")
        e(f"s_lshl_b32 s6, s{S_SLOT}, 11")
        e("v_lshl_add_u32 v4, v1, 7, s6")
        e("v_min_u32 v4, Lend-Lpc0, v4")
        e("s_mov_b64 exec, 0xffff")
        e("global_load_dword v15, v4, s[4:5]")
        e("s_mov_b64 exec, -1")
        e.label(lcp)
    l = e.new("Ltg")
    e("s_cmp_lg_u32 s2, 0")
    e(f"s_cbranch_scc1 {l}")
    e(f"s_cmp_lg_u32 s{S_WAVE}, 3")
    e(f"s_cbranch_scc1 {l}")
    e("s_memrealtime s[4:5]")
    e("s_waitcnt lgkmcnt(0)")
    srd(e, SRD_P, P_DBG, 0, 256)
    e("s_or_b32 s4, s4, 1")
    e("v_mov_b32 v4, 0")
    e("v_mov_b32 v6, s4")
    e("v_mov_b32 v7, s5")
    e("s_mov_b64 exec, 1")
    e(f"buffer_store_dwordx2 v[6:7], v4, {SRD(SRD_P)}, 0 offen sc1")
    e("s_mov_b64 exec, -1")
    e.label(l)
    e(f"s_cmp_ge_u32 s{S_WAVE}, 4")
    e("s_cbranch_scc1 Lcold_L1")
    if os.environ.get("PRIO") == "C": e("s_setprio 3")

    order = [1, 2, 3, 5, 6, 7]
    cons = {1: t1_consumer, 2: t2_consumer, 3: t3_consumer, 5: t5_consumer, 6: t6_consumer, 7: t7_consumer}
    pub_in = {2, 3, 5, 6}

    for k in order:
        t = T[k]
        TASK[0] = k - 1
        stamp(e, 0)
        t.decode(e)
        if k == 1:
            e("s_waitcnt lgkmcnt(0)")
        t.srd_c(e)
        if k in (2, 7):
            store_addrs(e, t.c, False)
        elif k != 6:
            fimg_addrs(e, t.c, F if k == 5 else 640, k == 1)
        PUB[0] = k in pub_in
        cons[k](e, t)
        stamp(e, 4)
        stamp_flush(e, 5)
        if k == 7:
            e("s_endpgm")
        if k == 3:
            TASK[0] = 3
            attention(e)
    e.label("Lcold_L1")
    if os.environ.get("PRIO") == "L": e("s_setprio 3")
    t = T[1]
    t.decode(e)
    loader_setup(e, t.c)
    e("s_waitcnt lgkmcnt(0)")
    t.srd_ab(e)
    issue_n(e, t.c, t.asc, t.c.P)
    E_ = t.c.P

    def rot_flags(e):
        e(f"s_mov_b32 s{S_FPREV}, s{S_FIDX}")
        e(f"s_mov_b32 s{S_FIDX}, s{S_FNEXT}")

    for idx, k in enumerate(order):
        t = T[k]
        nk = order[idx + 1] if idx + 1 < len(order) else None
        rot_flags(e)
        busy = [t.c.LAST, (t.c.STG, t.c.STGEND)]
        if k == 3:
            def hook(e):
                att_decode(e)
                att_loader_setup(e)
                poll_issue(e, deps_a)
                return 0
            loader_main(e, t.c, t.asc, E_, True, hook)
            poll_check(e, 120 * 1024, 0x40)
            att_issue(e, 20)
            e("s_barrier")
            att_issue(e, 1)
            rot_flags(e)
            n_t = T[5]
            n_t.decode(e)
            loader_setup(e, n_t.c)
            n_t.srd_ab(e)
            e("s_waitcnt vmcnt(0)")
            e("s_barrier")
            stamp(e, 0)
            store_flag(e)
            stamp(e, 1)
            poll_issue(e, n_t.deps)
            poll_check(e, 95 * 1024, 0x50)
            stamp(e, 2)
            if 'stamp' in OPT: e(f"s_mov_b32 s12, s{S_CNT}")
            E_ = n_early([(0, 96 * 1024)], n_t.c)
            touch_task(e, n_t)
            issue_n(e, n_t.c, n_t.asc, E_)
            stamp(e, 3)
            TASK[0] = 7
            stamp_flush(e, 5, int(os.environ.get("LW", "4")))
            e("s_barrier")
            continue
        hook = None
        if nk:
            n_t = T[nk]

            def hook(e, n_t=n_t):
                n_t.decode(e)
                loader_setup(e, n_t.c)
                n_t.srd_ab(e)
                if n_t.deps:
                    poll_issue(e, n_t.deps)
                return 0
        loader_main(e, t.c, t.asc, E_, k in pub_in, hook)
        if not nk:
            e("s_endpgm")
            continue
        if k == 5:
            e("s_barrier")
        if n_t.deps:
            poll_check(e, {3: 84, 6: 62, 7: 120}[nk] * 1024, nk * 16)
        E_ = n_early(busy, n_t.c)
        touch_task(e, n_t)
        issue_n(e, n_t.c, n_t.asc, E_)
        if k == 5 and 'now4' not in OPT:
            srd(e, SRD_P, P_WS, WS_W4I, F * 1280)
            e(f"s_mul_i32 s{S_T0}, s{S_CT}, {F*160}")
            e(f"s_and_b32 s{S_T1}, s{S_SLOT}, 7")
            e(f"s_mul_i32 s{S_T1}, s{S_T1}, {F*20}")
            e(f"s_add_u32 s{S_T0}, s{S_T0}, s{S_T1}")
            touch_contig(e, SRD_P, f"s{S_T0}", F * 20)
        if k == 1:
            fetch_tag(e)
    e.label("Lend")
    e("s_endpgm")

    head = open("cdna_kernels/" + NAME + ".s.ref").read().split("; Override launch")[0]
    out = head
    out += f"; WS qkv {WS_QKV} 2048 1920\n"
    out += "; @launch grid=(256,1,1) block=(512,1,1) lds=163840\n"
    out += '.amdgcn_target "amdgcn-amd-amdhsa--gfx950"\n.text\n'
    out += "\n".join(e.L) + "\n"
    out += '.section .rodata,"a"\n'
    out += f""".p2align 6
.amdhsa_kernel {name}
  .amdhsa_next_free_vgpr {NVGPR}
  .amdhsa_next_free_sgpr 102
  .amdhsa_accum_offset 256
  .amdhsa_group_segment_fixed_size 0
  .amdhsa_kernarg_size 96
  .amdhsa_user_sgpr_count 2
  .amdhsa_user_sgpr_kernarg_segment_ptr 1
  .amdhsa_system_sgpr_workgroup_id_x 1
.end_amdhsa_kernel
"""
    path = sys.argv[1] if len(sys.argv) > 1 else "cdna_kernels/" + NAME + ".s"
    open(path, "w").write(out)
    print("wrote", path, len(e.L), "lines")


main()
```
